```python
import torch

def _softmax(x, axis=-1):
    return torch.softmax(x, dim=axis)

def _gelu(x):
    return torch.nn.functional.gelu(x, approximate='tanh')

def _silu(x):
    return torch.nn.functional.silu(x)

def _sigmoid(x):
    return torch.sigmoid(x)

def _layernorm(x, axis=-1, eps=1e-05):
    m = x.mean(dim=axis, keepdim=True)
    v = x.var(dim=axis, keepdim=True, unbiased=False)
    return (x - m) / torch.sqrt(v + eps)

def _scatter_add(tgt, idx, src, axis=0):
    return tgt.clone().index_add_(axis, idx, src)

def _segment_sum(src, seg, n):
    out = torch.zeros((n,) + src.shape[1:], dtype=src.dtype)
    return out.index_add_(0, seg, src)

def _pad(x, pw):
    flat = tuple((v for pair in reversed(pw) for v in pair))
    return torch.nn.functional.pad(x, flat)
kernel_name = 'adaLN_cond__grouped_kv_mqa__mixer_channel_mlp__prompt'

def setup_inputs():

    _w = lambda a: (lambda t: t.to(torch.bfloat16) if t.is_floating_point() else t)(torch.as_tensor(a))

    def _A_setup():
        B, S, D, H = (1, 2048, 640, 32)
        Dh = D // H
        return {'x': _w((lambda *s: torch.randn(*s, dtype=torch.bfloat16) * 0.05)(B, S, D)), 'wq': _w((lambda *s: torch.randn(*s, dtype=torch.bfloat16) * 0.05)(D, H * Dh)), 'wk': _w((lambda *s: torch.randn(*s, dtype=torch.bfloat16) * 0.05)(D, Dh)), 'wv': _w((lambda *s: torch.randn(*s, dtype=torch.bfloat16) * 0.05)(D, Dh)), 'wo': _w((lambda *s: torch.randn(*s, dtype=torch.bfloat16) * 0.05)(H * Dh, D))}
    _A_in = _A_setup()

    def _B_setup():
        B, S, D, F = (1, 2048, 640, 1728)
        return {'x': _w((lambda *s: torch.randn(*s, dtype=torch.bfloat16) * 0.05)(B, S, D)), 'w1': _w((lambda *s: torch.randn(*s, dtype=torch.bfloat16) * 3.2)(D, F) * D ** (-0.5)), 'b1': _w((lambda *s: torch.randn(*s, dtype=torch.bfloat16) * 0.8)(F)), 'w2': _w((lambda *s: torch.randn(*s, dtype=torch.bfloat16) * 3.2)(F, D) * F ** (-0.5)), 'b2': _w((lambda *s: torch.randn(*s, dtype=torch.bfloat16) * 3.2)(D))}
    _B_in = _B_setup()
    return {'A_x': _A_in['x'], 'A_wq': _A_in['wq'], 'A_wk': _A_in['wk'], 'A_wv': _A_in['wv'], 'A_wo': _A_in['wo'], 'B_x': _B_in['x'], 'B_w1': _B_in['w1'], 'B_b1': _B_in['b1'], 'B_w2': _B_in['w2'], 'B_b2': _B_in['b2'], 'c': _w((lambda *s: torch.randn(*s, dtype=torch.bfloat16) * 0.1)(1, 640) * 8.0), 'w_mod': _w((lambda *s: torch.randn(*s, dtype=torch.bfloat16) * 0.1)(640, 6 * 640) * 640 ** (-0.5) * 8.0)}

def reference(A_x, A_wq, A_wk, A_wv, A_wo, B_x, B_w1, B_b1, B_w2, B_b2, c, w_mod):

    def _A_ref(x, wq, wk, wv, wo):
        B, S, D = x.shape
        H = 32
        Dh = D // H
        q = (lambda x, *d: x.permute(*d))((x @ wq).reshape(B, S, H, Dh), 0, 2, 1, 3)
        k = x @ wk
        v = x @ wv
        scores = torch.einsum('bhqd,bkd->bhqk', q, k) * Dh ** (-0.5)
        p = _softmax(scores, axis=-1)
        o = torch.einsum('bhqk,bkd->bhqd', p, v)
        return (lambda x, *d: x.permute(*d))(o, 0, 2, 1, 3).reshape(B, S, H * Dh) @ wo

    def _B_ref(x, w1, b1, w2, b2):
        y = _layernorm(x, axis=-1)
        h = _gelu(torch.einsum('bsd,df->bsf', y, w1) + b1)
        return torch.einsum('bsf,fd->bsd', h, w2) + b2
    x = A_x
    mod = (_silu(c) @ w_mod).reshape(c.shape[0], 6, 1, -1)
    sa, ca, ga, sb, cb, gb = (mod[:, 0].clone(), mod[:, 1].clone(), mod[:, 2].clone(), mod[:, 3].clone(), mod[:, 4].clone(), mod[:, 5].clone())
    h = _layernorm(x, axis=-1) * (1 + ca) + sa
    x = x + ga * _A_ref(h, A_wq, A_wk, A_wv, A_wo)
    h = _layernorm(x, axis=-1) * (1 + cb) + sb
    x = x + gb * _B_ref(h, B_w1, B_b1, B_w2, B_b2)
    return x
```

```python
import re
import copy

TRANS = ("v_exp_f32", "v_log_f32", "v_rcp_f32", "v_rsq_f32", "v_sqrt_f32", "v_sin_f32", "v_cos_f32",
         "v_exp_f16", "v_rcp_iflag_f32")

_reg_re = re.compile(r"^(-|\|)?(abs\()?([vas])(\d+|\[(\d+):(\d+)\])\)?\|?$")


def parse_reg(tok):
    tok = tok.strip()
    if tok in ("vcc",):
        return [("s", "vcc")]
    if tok in ("vcc_lo", "vcc_hi"):
        return [("s", "vcc")]
    if tok in ("exec", "exec_lo", "exec_hi"):
        return [("s", "exec")]
    if tok == "m0":
        return [("s", "m0")]
    m = _reg_re.match(tok)
    if not m:
        return []
    k = m.group(3)
    if m.group(5) is not None:
        return [(k, i) for i in range(int(m.group(5)), int(m.group(6)) + 1)]
    return [(k, int(m.group(4)))]


def mfma_passes(mn):
    if "32x32x16" in mn or "32x32x8" in mn:
        return 8
    if "16x16x32" in mn or "16x16x16" in mn:
        return 4
    if "32x32x4_2b" in mn:
        return 16
    if "4x4x4" in mn:
        return 2
    raise ValueError(mn)


class Ins:
    __slots__ = ("text", "mn", "cls", "vw", "vr", "sw", "sr", "A", "B", "C", "passes", "dpp", "perm", "rdlane",
                 "wide_store", "ldsdma", "ws", "sdwa")


def parse(text):
    t = text.split(";")[0].strip()
    parts = t.split(None, 1)
    mn = parts[0]
    rest = parts[1] if len(parts) > 1 else ""
    ops = [o.strip() for o in rest.split(",")] if rest else []
    mods = ""
    if ops:
        last = ops[-1].split(None, 1)
        if len(last) > 1:
            ops[-1] = last[0]
            mods = last[1]
    I = Ins()
    I.text = text
    I.mn = mn
    I.vw, I.vr, I.sw, I.sr = set(), set(), set(), set()
    I.A = I.B = I.C = None
    I.passes = 0
    I.dpp = ("row_" in rest) or ("quad_perm" in rest) or ("_dpp" in mn) or ("wave_" in rest)
    I.perm = mn.startswith("v_permlane")
    I.rdlane = mn.startswith("v_readlane") or mn.startswith("v_readfirstlane")
    I.wide_store = None
    I.ldsdma = False
    I.ws = 1
    I.sdwa = "dst_sel" in rest
    regs = [parse_reg(o) for o in ops]

    def addr(rs, W=False):
        for r in rs:
            if r[0] == "s":
                (I.sw if W else I.sr).add(r)
            else:
                (I.vw if W else I.vr).add(r)

    if mn == "s_nop":
        I.cls = "nop"
        I.ws = int(ops[0], 0) + 1
        return I
    if mn.startswith("v_mfma"):
        I.cls = "mfma"
        I.passes = mfma_passes(mn)
        addr(regs[0], True)
        I.A, I.B, I.C = regs[1], regs[2], regs[3]
        for r in regs[1:]:
            addr(r)
        return I
    if mn.startswith("v_"):
        base = mn.replace("_e32", "").replace("_e64", "").replace("_dpp", "").replace("_sdwa", "")
        I.cls = "trans" if base in TRANS else ("dot" if base.startswith("v_dot") else "valu")
        if base.startswith("v_permlane") and "swap" in base:
            addr(regs[0], True); addr(regs[1], True); addr(regs[0]); addr(regs[1])
            return I
        if base.startswith("v_cmp"):
            addr(regs[0], True)
            for r in regs[1:]:
                addr(r)
            return I
        if base in ("v_add_co_u32", "v_sub_co_u32", "v_addc_co_u32", "v_subb_co_u32", "v_subrev_co_u32"):
            addr(regs[0], True); addr(regs[1], True)
            for r in regs[2:]:
                addr(r)
            return I
        addr(regs[0], True)
        for r in regs[1:]:
            addr(r)
        if base in ("v_fmac_f32", "v_dot2c_f32_bf16", "v_pk_fmac_f16", "v_writelane_b32") or I.sdwa or I.dpp:
            addr(regs[0])
        return I
    if mn.startswith("buffer_") or mn.startswith("global_"):
        I.cls = "vmem"
        if mn in ("buffer_wbl2", "buffer_inv"):
            return I
        allr = regs
        isload = "_load" in mn
        if mn.startswith("buffer_"):
            if isload and re.search(r"\blds\b", mods):
                I.ldsdma = True
                for r in allr:
                    addr(r)
                I.sr.add(("s", "m0"))
            elif isload:
                addr(allr[0], True)
                if "d16" in mn:
                    addr(allr[0])
                for r in allr[1:]:
                    addr(r)
            else:
                for r in allr:
                    addr(r)
                if "atomic" in mn and "sc0" in mods:
                    addr(allr[0], True)
                if len(allr[0]) >= 3:
                    I.wide_store = set(allr[0])
        else:
            if isload:
                addr(allr[0], True)
                for r in allr[1:]:
                    addr(r)
            elif "atomic" in mn and "sc0" in mods:
                addr(allr[0], True)
                for r in allr[1:]:
                    addr(r)
            else:
                for r in allr:
                    addr(r)
                if len(allr[1]) >= 3:
                    I.wide_store = set(allr[1])
        return I
    if mn.startswith("ds_"):
        I.cls = "ds"
        if mn.startswith("ds_read") or "_rtn" in mn or mn.startswith("ds_bpermute") or mn.startswith("ds_swizzle") \
                or mn.startswith("ds_permute"):
            addr(regs[0], True)
            for r in regs[1:]:
                addr(r)
        else:
            for r in regs:
                addr(r)
        return I
    if mn.startswith("s_"):
        I.cls = "salu"
        if mn.startswith("s_load") or mn.startswith("s_buffer_load") or mn in ("s_memtime", "s_memrealtime"):
            I.cls = "smem"
        if mn.startswith(("s_cmp", "s_cbranch", "s_branch", "s_waitcnt", "s_barrier", "s_setprio", "s_endpgm",
                          "s_sleep", "s_bitcmp")):
            for r in regs:
                addr(r)
            return I
        if regs:
            addr(regs[0], True)
            for r in regs[1:]:
                addr(r)
        if "saveexec" in mn:
            I.sw.add(("s", "exec"))
        return I
    raise ValueError("unknown instr: " + text)


XDL_AB = {2: 5, 4: 8, 8: 12, 16: 20}
XDL_COV = {2: 4, 4: 6, 8: 10, 16: 18}
XDL_WAR = {2: 1, 4: 3, 8: 7, 16: 15}


def need(P, C):
    n = 0
    valu_p = P.cls in ("valu", "trans", "dot")
    valu_c = C.cls in ("valu", "trans", "dot")
    if valu_p:
        if C.cls == "mfma" and (P.vw & C.vr):
            n = max(n, 2)
        if P.cls == "trans" and valu_c and C.cls != "trans" and (P.vw & C.vr):
            n = max(n, 1)
        if P.cls == "trans" and C.cls in ("vmem", "ds") and (P.vw & C.vr):
            n = max(n, 1)
        if P.cls == "dot" and (P.vw & (C.vr | C.vw)):
            same = (C.cls == "dot" and C.mn == P.mn)
            if same:
                ops = [o.strip() for o in C.text.split(";")[0].split(None, 1)[1].split(",")]
                ab = set()
                for o in ops[1:3]:
                    ab |= set(parse_reg(o.split()[0]))
                if P.vw & ab:
                    n = max(n, 3)
            else:
                n = max(n, 3)
        if P.sw:
            if C.cls == "vmem" and (P.sw & C.sr):
                n = max(n, 5)
            if (valu_c or C.cls == "mfma") and (P.sw & C.sr):
                n = max(n, 4 if C.rdlane else 2)
        if P.vw & C.vr:
            if C.rdlane:
                n = max(n, 1)
            if C.dpp or C.perm:
                n = max(n, 2)
        if P.sdwa and valu_c and (P.vw & (C.vr | C.vw)):
            n = max(n, 1)
    if P.cls == "mfma":
        D = P.vw
        if C.cls == "mfma":
            c = set(C.C)
            if D & c:
                if c == D and C.passes == P.passes:
                    n = max(n, 2 if P.passes == 2 else 0)
                else:
                    n = max(n, XDL_COV[P.passes])
            if D & (set(C.A) | set(C.B)):
                n = max(n, XDL_AB[P.passes])
            if (D & C.vw) and not (D & c) and C.passes < P.passes:
                n = max(n, XDL_AB[P.passes])
        elif valu_c or C.cls in ("vmem", "ds"):
            if D & (C.vr | C.vw):
                n = max(n, XDL_AB[P.passes])
        if valu_c and (set(P.C) & C.vw):
            n = max(n, XDL_WAR[P.passes])
        if C.cls in ("vmem", "ds") and (set(P.C) & C.vw):
            n = max(n, XDL_WAR[P.passes])
    if P.cls == "salu" and ("s", "m0") in P.sw and C.ldsdma:
        n = max(n, 1)
    if P.wide_store and (P.wide_store & C.vw):
        n = max(n, 2 if valu_c else 1)
    return n


class Asm:
    WINDOW = 24

    def __init__(self):
        self.lines = []
        self.hists = [[]]
        self.saved = {}
        self.nops_inserted = 0
        self.uid = 0

    def raw(self, text):
        self.lines.append(text)

    def comment(self, text):
        self.lines.append("    ; " + text)

    def _push(self, I):
        for h in self.hists:
            h.append(I)
            if len(h) > self.WINDOW:
                del h[0]

    def _req(self, C):
        req = 0
        for h in self.hists:
            dist = 0
            for P in reversed(h):
                n = need(P, C)
                if n > dist:
                    req = max(req, n - dist)
                dist += P.ws
                if dist >= 20:
                    break
        return req

    def e(self, text):
        ptext = re.sub(r"\s(op_sel|op_sel_hi|neg_lo|neg_hi):\[[^\]]*\]", "", text)
        I = parse(ptext)
        req = self._req(I)
        while req > 0:
            k = min(req, 16)
            self.lines.append(f"    s_nop {k-1}")
            self._push(parse(f"s_nop {k-1}"))
            self.nops_inserted += k
            req -= k
        self.lines.append("    " + text)
        self._push(I)

    def __call__(self, text):
        for ln in text.strip().split("\n"):
            ln = ln.strip()
            if ln and not ln.startswith(";"):
                self.e(ln)

    def vm(self, tag, text):
        self.e(text)
        self.vmq = getattr(self, "vmq", []) + [tag]

    def ds(self, tag, text):
        q = getattr(self, "dsq", [])
        if len(q) >= 15:
            self.e("s_waitcnt lgkmcnt(14)")
            q = q[len(q) - 14:]
        self.e(text)
        self.dsq = q + [tag]

    def _n_after(self, q, tags):
        last = -1
        for i, t in enumerate(q):
            if t in tags:
                last = i
        return last

    def wait(self, vm=None, ds=None):
        parts = []
        if vm is not None:
            q = getattr(self, "vmq", [])
            last = self._n_after(q, set(vm))
            if last >= 0:
                n = len(q) - 1 - last
                assert n <= 63
                parts.append(f"vmcnt({n})")
                self.vmq = q[last + 1:]
        if ds is not None:
            q = getattr(self, "dsq", [])
            last = self._n_after(q, set(ds)) if ds != "all" else len(q) - 1
            if last >= 0:
                n = len(q) - 1 - last
                parts.append(f"lgkmcnt({n})")
                self.dsq = q[last + 1:]
        if parts:
            self.e("s_waitcnt " + " ".join(parts))

    def newlabel(self, base="L"):
        self.uid += 1
        return f"{base}_{self.uid}"

    def branch(self, instr, label):
        self.e(f"{instr} {label}")
        self.saved.setdefault(label, []).extend(copy.deepcopy(self.hists))
        if instr == "s_branch":
            self.hists = []

    def label(self, label):
        self.lines.append(f"{label}:")
        self.hists = self.hists + self.saved.pop(label, [])
        if not self.hists:
            self.hists = [[]]
        if len(self.hists) > 8:
            self.pad_all()

    def pad_all(self):
        worst = 0
        for h in self.hists:
            dist = 0
            for P in reversed(h):
                w = 0
                if P.cls == "mfma":
                    w = XDL_AB[P.passes]
                elif P.cls in ("valu", "trans"):
                    w = 5 if P.sw else 2
                elif P.cls == "dot":
                    w = 3
                elif P.wide_store:
                    w = 2
                elif P.cls == "salu":
                    w = 1
                worst = max(worst, w - dist)
                dist += P.ws
        while worst > 0:
            k = min(worst, 16)
            self.lines.append(f"    s_nop {k-1}")
            worst -= k
        self.hists = [[]]

    def loop(self, label, body, back):
        dry = Asm()
        dry.hists = copy.deepcopy(self.hists)
        dry.uid = self.uid
        body(dry)
        for b in back:
            dry.e(b)
        self.hists = self.hists + dry.hists
        self.lines.append(f"{label}:")
        body(self)
        for b in back:
            self.e(b)

    def text(self):
        return "\n".join(self.lines) + "\n"
```

```python
from gen import *

OOB = "0x40000000"
MODF = 0x010000


def gemm_main(a, KS, nmu, nu, Areg, Breg, acc, cinit, lds_b, issue, D, CH=4, pre_step=None):
    NC = (KS + CH - 1) // CH
    for c in range(min(D, NC)):
        for f in issue(c):
            f()

    def bread(s):
        for i in range(nu):
            va, off = lds_b(s, i)
            r = Breg(s & 1, i)
            a.ds(("B", s), f"ds_read_b128 v[{r}:{r+3}], {va} offset:{off}")

    if pre_step:
        pre_step(-1)
    a.wait(vm=[("c", 0)], ds="all")
    a("s_barrier")
    bread(0)
    for s in range(KS):
        c = s // CH
        if (s + 1) % CH == 0 and s + 1 < KS:
            a.wait(vm=[("c", c + 1)])
            a("s_barrier")
        if s + 1 < KS:
            bread(s + 1)
        if c + D < NC:
            fl = issue(c + D)
            n = len(fl)
            t = s % CH
            for f in fl[n * t // CH: n * (t + 1) // CH]:
                f()
        if pre_step:
            pre_step(s)
        a.wait(ds=[("B", s)])
        for i in range(nu):
            for mu in range(nmu):
                d = acc(mu, i)
                cin = cinit(mu, i) if s == 0 else f"v[{d}:{d+3}]"
                r = Breg(s & 1, i)
                a(f"v_mfma_f32_16x16x32_bf16 v[{d}:{d+3}], v[{r}:{r+3}], {Areg(s, mu)}, {cin}")


K3_LDS = 7 * 20 * 1024


def gen_k3(a):
    name = "mlp1_kernel"
    kernel_header(a, name)
    a.vmq, a.dsq = [], []
    ACC, BR, BIAS, T = 32, 88, 144, 172
    a("s_cmp_ge_u32 s2, 256")
    a.branch("s_cbranch_scc1", "K3_END")
    stamp(a, 0)
    a(f"""
    s_load_dwordx2 s[4:5], s[0:1], {A_WS}
    s_load_dwordx2 s[6:7], s[0:1], {A_B1}
    v_and_b32 v1, 63, v0
    v_lshrrev_b32 v2, 6, v0
    s_and_b32 s20, s2, 7
    s_lshr_b32 s21, s2, 3
    s_lshr_b32 s22, s20, 1
    s_lshl_b32 s22, s22, 2
    s_and_b32 s23, s21, 3
    s_add_u32 s22, s22, s23
    s_and_b32 s23, s20, 1
    s_lshl_b32 s23, s23, 3
    s_lshr_b32 s24, s21, 2
    s_add_u32 s23, s23, s24
    s_mul_i32 s23, s23, 27
    s_lshr_b32 s23, s23, 2
    """)
    a("v_readfirstlane_b32 s3, v2")
    a(f"""
    v_lshlrev_b32 v3, 4, v1
    v_add_u32 v4, 61440, v3
    v_add_u32 v5, 122880, v3
    v_lshrrev_b32 v6, 4, v1
    v_lshlrev_b32 v7, 3, v6
    s_lshl_b32 s24, s22, 3
    s_lshl_b32 s25, s3, 1
    s_add_u32 s24, s24, s25
    s_mul_i32 s25, s24, 20480
    s_add_u32 s25, s25, {YF}
    s_lshl_b32 s26, s3, 10
    s_mul_i32 s27, s23, 20480
    s_add_u32 s27, s27, s26
    s_add_u32 s27, s27, {W1F}
    s_lshl_b32 s28, s23, 5
    s_waitcnt lgkmcnt(0)
    """)
    srd(a, 12, 4, WS_SIZE)
    srd(a, 16, 6, 1728 * 2)
    for i in range(7):
        a.vm("bias", f"buffer_load_dwordx2 v[{T+2*i}:{T+2*i+1}], v7, s[16:19], s28 offen offset:{32*i}")

    def issue(c):
        fl = []
        for mu in range(2):
            def f(mu=mu):
                a(f"s_add_u32 s30, s25, {mu*20480 + c*4096}")
                for t in range(4):
                    r = ((4 * c + t) * 2 + mu) * 4
                    a.vm(("c", c), f"buffer_load_dwordx4 a[{r}:{r+3}], v3, s[12:15], s30 offen offset:{1024*t}")
            fl.append(f)
        for i in range(7):
            def f(i=i):
                a(f"s_add_u32 m0, s26, {i*20480 + c*4096}")
                a(f"s_add_u32 s30, s27, {i*20480 + c*4096}")
                a.vm(("c", c), f"buffer_load_dwordx4 v3, s[12:15], s30 offen lds")
            fl.append(f)
        return fl

    def pre_step(s):
        if s == -1:
            a.wait(vm=["bias"])
            for i in range(7):
                a(f"v_lshlrev_b32 v{BIAS+4*i}, 16, v{T+2*i}")
                a(f"v_and_b32 v{BIAS+4*i+1}, 0xffff0000, v{T+2*i}")
                a(f"v_lshlrev_b32 v{BIAS+4*i+2}, 16, v{T+2*i+1}")
                a(f"v_and_b32 v{BIAS+4*i+3}, 0xffff0000, v{T+2*i+1}")
            stamp(a, 1)

    gemm_main(a, 20, 2, 7,
              Areg=lambda s, mu: f"a[{(s*2+mu)*4}:{(s*2+mu)*4+3}]",
              Breg=lambda st, i: BR + 28 * st + 4 * i,
              acc=lambda mu, i: ACC + 4 * (mu * 7 + i),
              cinit=lambda mu, i: f"v[{BIAS+4*i}:{BIAS+4*i+3}]",
              lds_b=lambda s, i: (("v3", "v4", "v5")[i // 3], ((i % 3) * 20 + s) * 1024),
              issue=issue, D=2, pre_step=pre_step)
    stamp(a, 2)
    a("s_cmp_lg_u32 s2, 0")
    a.branch("s_cbranch_scc1", "K3_NOGB")
    a("v_lshlrev_b32 v8, 4, v0")
    for p in range(4):
        a(f"s_mov_b32 s30, {MODP + p*15360 + 3200*4}")
        a(f"buffer_load_dwordx4 v[{BR+4*p}:{BR+4*p+3}], v8, s[12:15], s30 offen")
    a("s_waitcnt vmcnt(0)")
    for e in range(4):
        a(f"v_add_f32 v{BR+e}, v{BR+e}, v{BR+4+e}")
        a(f"v_add_f32 v{BR+8+e}, v{BR+8+e}, v{BR+12+e}")
    for e in range(4):
        a(f"v_add_f32 v{BR+e}, v{BR+e}, v{BR+8+e}")
    for e in range(4):
        bf16_round(a, BR + e, BR + e)
    a(f"""
    v_mov_b32 v9, {OOB}
    v_cmp_gt_u32 vcc, 160, v0
    v_cndmask_b32 v8, v9, v8, vcc
    s_mov_b32 s30, {MODF}
    buffer_store_dwordx4 v[{BR}:{BR+3}], v8, s[12:15], s30 offen
    """)
    a.label("K3_NOGB")
    c0 = -2.0 * 0.7978845608028654 * LOG2E
    c1 = c0 * 0.044715
    a(f"s_mov_b32 s34, {f32(c1)}")
    a(f"v_mov_b32 v10, {f32(c0)}")
    a(f"s_mul_i32 s31, s24, {54*1024}")
    a(f"s_add_u32 s31, s31, {HF}")
    for i in range(7):
        a(f"""
        s_add_u32 s32, s23, {i}
        s_lshr_b32 s33, s32, 1
        s_lshl_b32 s33, s33, 10
        s_and_b32 s32, s32, 1
        s_lshl_b32 s32, s32, 3
        s_add_u32 s33, s33, s32
        s_add_u32 s33, s33, s31
        s_add_u32 s35, s33, {54*1024}
        """)
        regs = [ACC + 4 * (mu * 7 + i) + r for mu in range(2) for r in range(4)]
        tt = [T + k for k in range(8)]
        for k, x in enumerate(regs):
            a(f"v_mul_f32 v{tt[k]}, v{x}, v{x}")
        for k, x in enumerate(regs):
            a(f"v_fma_f32 v{tt[k]}, v{tt[k]}, s34, v10")
        for k, x in enumerate(regs):
            a(f"v_mul_f32 v{tt[k]}, v{tt[k]}, v{x}")
        for k, x in enumerate(regs):
            a(f"v_exp_f32 v{tt[k]}, v{tt[k]}")
        for k, x in enumerate(regs):
            a(f"v_add_f32 v{tt[k]}, 1.0, v{tt[k]}")
        for k, x in enumerate(regs):
            a(f"v_rcp_f32 v{tt[k]}, v{tt[k]}")
        for k, x in enumerate(regs):
            a(f"v_mul_f32 v{x}, v{x}, v{tt[k]}")
        for mu in range(2):
            d = ACC + 4 * (mu * 7 + i)
            a(f"v_cvt_pk_bf16_f32 v{d}, v{d}, v{d+1}")
            a(f"v_cvt_pk_bf16_f32 v{d+1}, v{d+2}, v{d+3}")
            a(f"buffer_store_dwordx2 v[{d}:{d+1}], v3, s[12:15], s{33 if mu == 0 else 35} offen")
    stamp(a, 3)
    stamp_flush(a, 3, 4, 20, 4)
    a.label("K3_END")
    a("s_endpgm")
    return name, kernel_desc(name, 256 + 160, accum=256), f"grid=(256,1,1) block=(256,1,1) lds={K3_LDS}"


K4_RING = 6
K4_LDS = K4_RING * 20480


def gen_k4(a):
    name = "mlp2_kernel"
    kernel_header(a, name)
    a.vmq, a.dsq = [], []
    ACC, BR, BIAS, T, GB, XR = 32, 52, 92, 112, 124, 144
    a("s_cmp_ge_u32 s2, 256")
    a.branch("s_cbranch_scc1", "K4_END")
    stamp(a, 0)
    a(f"""
    s_load_dwordx2 s[4:5], s[0:1], {A_WS}
    s_load_dwordx2 s[6:7], s[0:1], {A_B2}
    s_load_dwordx2 s[8:9], s[0:1], {A_OUT}
    v_and_b32 v1, 63, v0
    v_lshrrev_b32 v2, 6, v0
    s_and_b32 s20, s2, 7
    s_lshr_b32 s21, s2, 3
    s_lshr_b32 s22, s20, 1
    s_lshl_b32 s22, s22, 3
    s_and_b32 s23, s21, 7
    s_add_u32 s22, s22, s23
    s_and_b32 s23, s20, 1
    s_lshl_b32 s23, s23, 2
    s_lshr_b32 s24, s21, 3
    s_add_u32 s23, s23, s24
    """)
    a("v_readfirstlane_b32 s3, v2")
    a(f"""
    v_lshlrev_b32 v3, 4, v1
    v_add_u32 v4, 61440, v3
    v_lshrrev_b32 v6, 4, v1
    v_lshlrev_b32 v7, 3, v6
    v_lshlrev_b32 v8, 4, v6
    v_and_b32 v9, 15, v1
    v_mul_u32_u24 v9, 1280, v9
    v_add_u32 v9, v9, v7
    s_lshl_b32 s24, s22, 2
    s_add_u32 s24, s24, s3
    s_mul_i32 s25, s24, {54*1024}
    s_add_u32 s25, s25, {HF}
    s_lshl_b32 s26, s3, 10
    s_mul_i32 s27, s23, {5*54*1024}
    s_add_u32 s27, s27, s26
    s_add_u32 s27, s27, {W2F}
    s_mul_i32 s28, s23, 160
    s_mul_i32 s29, s24, {16*1280}
    s_add_u32 s29, s29, s28
    s_waitcnt lgkmcnt(0)
    """)
    srd(a, 12, 4, WS_SIZE)
    srd(a, 16, 6, 640 * 2)
    srd(a, 36, 8, 2048 * 1280)
    for i in range(5):
        a.vm("bias", f"buffer_load_dwordx2 v[{T+2*i}:{T+2*i+1}], v7, s[16:19], s28 offen offset:{32*i}")

    def issue(c):
        fl = []
        nst = min(4, 54 - 4 * c)

        def fa():
            a(f"s_add_u32 s30, s25, {c*4096}")
            for t in range(nst):
                r = (4 * c + t) * 4
                a.vm(("c", c), f"buffer_load_dwordx4 a[{r}:{r+3}], v3, s[12:15], s30 offen offset:{1024*t}")
        fl.append(fa)
        for i in range(5):
            def f(i=i):
                a(f"s_add_u32 m0, s26, {(c % K4_RING)*20480 + i*4096}")
                a(f"s_add_u32 s30, s27, {i*54*1024 + c*4096}")
                a.vm(("c", c), f"buffer_load_dwordx4 v3, s[12:15], s30 offen lds")
            fl.append(f)
        return fl

    def pre_step(s):
        if s == -1:
            a.wait(vm=["bias"])
            for i in range(5):
                a(f"v_lshlrev_b32 v{BIAS+4*i}, 16, v{T+2*i}")
                a(f"v_and_b32 v{BIAS+4*i+1}, 0xffff0000, v{T+2*i}")
                a(f"v_lshlrev_b32 v{BIAS+4*i+2}, 16, v{T+2*i+1}")
                a(f"v_and_b32 v{BIAS+4*i+3}, 0xffff0000, v{T+2*i+1}")
            stamp(a, 1)
        if s == 46:
            a(f"s_lshl_b32 s30, s28, 1")
            a(f"s_add_u32 s30, s30, {MODF}")
            a(f"s_add_u32 s31, s29, {X1}")
            for i in range(5):
                a.vm("epi", f"buffer_load_dwordx4 v[{GB+4*i}:{GB+4*i+3}], v8, s[12:15], s30 offen offset:{64*i}")
                a.vm("epi", f"buffer_load_dwordx2 v[{XR+2*i}:{XR+2*i+1}], v9, s[12:15], s31 offen offset:{32*i}")

    def lds_b(s, i):
        off = ((s // 4) % K4_RING) * 20480 + i * 4096 + (s % 4) * 1024
        return ("v3", off) if off < 61440 else ("v4", off - 61440)

    gemm_main(a, 54, 1, 5,
              Areg=lambda s, mu: f"a[{s*4}:{s*4+3}]",
              Breg=lambda st, i: BR + 20 * st + 4 * i,
              acc=lambda mu, i: ACC + 4 * i,
              cinit=lambda mu, i: f"v[{BIAS+4*i}:{BIAS+4*i+3}]",
              lds_b=lds_b, issue=issue, D=4, pre_step=pre_step)
    stamp(a, 2)
    a.wait(vm=["epi"])
    X = BR
    for i in range(5):
        a(f"v_lshlrev_b32 v{X+4*i}, 16, v{XR+2*i}")
        a(f"v_and_b32 v{X+4*i+1}, 0xffff0000, v{XR+2*i}")
        a(f"v_lshlrev_b32 v{X+4*i+2}, 16, v{XR+2*i+1}")
        a(f"v_and_b32 v{X+4*i+3}, 0xffff0000, v{XR+2*i+1}")
    for i in range(5):
        for r in range(4):
            a(f"v_fmac_f32 v{X+4*i+r}, v{GB+4*i+r}, v{ACC+4*i+r}")
        a(f"v_cvt_pk_bf16_f32 v{XR+2*i}, v{X+4*i}, v{X+4*i+1}")
        a(f"v_cvt_pk_bf16_f32 v{XR+2*i+1}, v{X+4*i+2}, v{X+4*i+3}")
        a(f"buffer_store_dwordx2 v[{XR+2*i}:{XR+2*i+1}], v9, s[36:39], s29 offen offset:{32*i}")
    stamp(a, 3)
    stamp_flush(a, 4, 4, 20, 4)
    a.label("K4_END")
    a("s_endpgm")
    return name, kernel_desc(name, 256 + 216, accum=256), f"grid=(256,1,1) block=(256,1,1) lds={K4_LDS}"
```

```python
from gen import *

OOB = "0x40000000"


def xor16_32_allreduce(a, v, tmp, op):
    a(f"v_mov_b32 v{tmp}, v{v}")
    a(f"v_permlane16_swap_b32 v{v}, v{tmp}")
    a(f"{op} v{v}, v{v}, v{tmp}")
    a(f"v_mov_b32 v{tmp}, v{v}")
    a(f"v_permlane32_swap_b32 v{v}, v{tmp}")
    a(f"{op} v{v}, v{v}, v{tmp}")


def row16_max(a, v):
    for sh in (8, 4, 2, 1):
        a(f"v_max_f32_dpp v{v}, v{v}, v{v} row_ror:{sh} row_mask:0xf bank_mask:0xf")


K1_TG = 7 * 20 * 1024
K1_LDS = K1_TG + 5120


def gen_k1(a):
    name = "qkv_kernel"
    kernel_header(a, name)
    AF, ACC, BF, TB, TMP = 64, 144, 172, 24, 56
    a("s_cmp_ge_u32 s2, 256")
    a.branch("s_cbranch_scc1", "K1_END")
    stamp(a, 0)
    a(f"""
    s_load_dwordx2 s[4:5], s[0:1], {A_WS}
    v_and_b32 v1, 63, v0
    v_lshrrev_b32 v2, 6, v0
    s_and_b32 s20, s2, 7
    s_bfe_u32 s21, s2, 0x30003
    s_lshr_b32 s22, s2, 6
    s_lshl_b32 s22, s22, 3
    s_add_u32 s20, s20, s22
    """)
    a("v_readfirstlane_b32 s3, v2")
    a(f"""
    v_lshlrev_b32 v2, 4, v0
    v_lshlrev_b32 v3, 4, v1
    s_lshl_b32 s22, s20, 2
    s_add_u32 s22, s22, s3
    s_mul_i32 s23, s22, 20480
    s_add_u32 s23, s23, {NF}
    s_lshl_b32 s24, s3, 10
    s_mul_i32 s25, s21, {5*20480}
    s_add_u32 s25, s25, s24
    s_add_u32 s25, s25, {WQF}
    s_lshr_b32 s26, s21, 2
    s_mul_i32 s27, s26, {2*20480}
    s_add_u32 s27, s27, s24
    s_add_u32 s27, s27, {WKVF}
    s_waitcnt lgkmcnt(0)
    """)
    srd(a, 12, 4, WS_SIZE)
    for p in range(4):
        a(f"s_mov_b32 s30, {MODP + p*15360}")
        a(f"buffer_load_dwordx4 v[{24+4*p}:{27+4*p}], v2, s[12:15], s30 offen")
        a(f"buffer_load_dwordx4 v[{40+4*p}:{43+4*p}], v2, s[12:15], s30 offen offset:2560")
    for c in range(5):
        a(f"s_add_u32 s30, s23, {c*4096}")
        for t in range(4):
            r = AF + 4 * (4 * c + t)
            a(f"buffer_load_dwordx4 v[{r}:{r+3}], v3, s[12:15], s30 offen offset:{1024*t}")
        for i in range(7):
            base = 25 if i < 5 else 27
            ii = i if i < 5 else i - 5
            a(f"s_add_u32 m0, s24, {i*20480 + c*4096}")
            a(f"s_add_u32 s30, s{base}, {ii*20480 + c*4096}")
            a(f"buffer_load_dwordx4 v3, s[12:15], s30 offen lds")
    a(f"""
    v_add_u32 v4, 61440, v3
    v_add_u32 v5, 122880, v3
    v_lshrrev_b32 v6, 4, v1
    v_lshlrev_b32 v7, 5, v6
    v_add_u32 v7, {K1_TG}, v7
    v_add_u32 v8, {K1_TG}, v2
    s_waitcnt vmcnt(55)
    """)
    for e in range(4):
        a(f"v_add_f32 v{24+e}, v{24+e}, v{28+e}")
        a(f"v_add_f32 v{32+e}, v{32+e}, v{36+e}")
        a(f"v_add_f32 v{40+e}, v{40+e}, v{44+e}")
        a(f"v_add_f32 v{48+e}, v{48+e}, v{52+e}")
    for e in range(4):
        a(f"v_add_f32 v{24+e}, v{24+e}, v{32+e}")
        a(f"v_add_f32 v{40+e}, v{40+e}, v{48+e}")
    for e in range(4):
        bf16_round(a, 24 + e, 24 + e)
        bf16_round(a, 40 + e, 40 + e)
    for e in range(4):
        a(f"v_add_f32 v{40+e}, 1.0, v{40+e}")
    for e in range(4):
        bf16_round(a, 40 + e, 40 + e)
    a("v_lshrrev_b32 v40, 16, v40")
    a("v_lshrrev_b32 v42, 16, v42")
    a("v_cmp_gt_u32 vcc, 160, v0")
    a("s_and_saveexec_b64 s[32:33], vcc")
    a("ds_write_b128 v8, v[40:43]")
    a("ds_write_b128 v8, v[24:27] offset:2560")
    a("s_mov_b64 exec, s[32:33]")
    stamp(a, 1)
    a("s_and_b32 s28, s21, 3")
    a("s_cmp_eq_u32 s28, s3")
    a.branch("s_cbranch_scc1", "K1_KVLOOP")

    def breg(i):
        return ("v3", "v4", "v5")[i // 3], (i % 3) * 20

    def reads(s, nu):
        st = s & 1
        tb = TB + 16 * st
        a(f"ds_read_b128 v[{tb}:{tb+3}], v7 offset:{s*128}")
        a(f"ds_read_b128 v[{tb+4}:{tb+7}], v7 offset:{s*128+16}")
        a(f"ds_read_b128 v[{tb+8}:{tb+11}], v7 offset:{s*128+2560}")
        a(f"ds_read_b128 v[{tb+12}:{tb+15}], v7 offset:{s*128+2576}")
        for i in range(nu):
            b, o = breg(i)
            r = BF + 28 * st + 4 * i
            a(f"ds_read_b128 v[{r}:{r+3}], {b} offset:{(o+s)*1024}")

    def mainloop(nu):
        for c in range(5):
            a(f"s_waitcnt vmcnt({44-11*c}) lgkmcnt(0)")
            a("s_barrier")
            stamp(a, 2 + c)
            reads(4 * c, nu)
            for t in range(4):
                s = 4 * c + t
                st = s & 1
                tb = TB + 16 * st
                af = AF + 4 * s
                a(f"s_waitcnt lgkmcnt({nu})")
                for e in range(8):
                    a(f"v_dot2_f32_bf16 v{TMP+e}, v{af+e//2}, v{tb+e}, v{tb+8+e}")
                for p in range(4):
                    a(f"v_cvt_pk_bf16_f32 v{af+p}, v{TMP+2*p}, v{TMP+2*p+1}")
                a(f"s_waitcnt lgkmcnt(0)")
                if t < 3:
                    reads(s + 1, nu)
                for i in range(nu):
                    r = BF + 28 * st + 4 * i
                    d = ACC + 4 * i
                    cin = "0" if s == 0 else f"v[{d}:{d+3}]"
                    a(f"v_mfma_f32_16x16x32_bf16 v[{d}:{d+3}], v[{r}:{r+3}], v[{af}:{af+3}], {cin}")

    mainloop(5)
    a.branch("s_branch", "K1_EPI")
    a.label("K1_KVLOOP")
    mainloop(7)
    a(f"""
    v_and_b32 v9, 15, v1
    s_lshl_b32 s30, s22, 4
    v_add_u32 v10, s30, v9
    s_cmp_eq_u32 s26, 0
    """)
    a.branch("s_cbranch_scc0", "K1_VEPI")
    T5, T6 = ACC + 20, ACC + 24
    a(f"""
    v_cvt_pk_bf16_f32 v12, v{T5}, v{T5+1}
    v_cvt_pk_bf16_f32 v13, v{T5+2}, v{T5+3}
    v_cvt_pk_bf16_f32 v14, v{T6}, v{T6+1}
    v_cvt_pk_bf16_f32 v15, v{T6+2}, v{T6+3}
    v_mul_u32_u24 v11, 48, v10
    v_lshl_add_u32 v11, v6, 3, v11
    v_dot2_f32_bf16 v16, v12, v12, 0
    v_dot2_f32_bf16 v16, v13, v13, v16
    v_dot2_f32_bf16 v16, v14, v14, v16
    v_dot2_f32_bf16 v16, v15, v15, v16
    s_mov_b32 s30, {KB}
    buffer_store_dwordx2 v[12:13], v11, s[12:15], s30 offen
    v_mov_b32 v17, 0x3f803f80
    v_mov_b32 v18, 0x00003f80
    v_cmp_eq_u32 vcc, 1, v6
    v_cndmask_b32 v14, v14, v17, vcc
    v_cndmask_b32 v15, v15, v18, vcc
    v_mov_b32 v17, {OOB}
    v_cmp_gt_u32 vcc, 2, v6
    v_cndmask_b32 v11, v17, v11, vcc
    buffer_store_dwordx2 v[14:15], v11, s[12:15], s30 offen offset:32
    """)
    xor16_32_allreduce(a, 16, 17, "v_add_f32")
    row16_max(a, 16)
    a(f"""
    s_lshl_b32 s30, s22, 2
    s_add_u32 s30, s30, {KST}
    v_mov_b32 v17, {OOB}
    v_cmp_eq_u32 vcc, 0, v1
    v_cndmask_b32 v17, v17, v1, vcc
    buffer_store_dword v16, v17, s[12:15], s30 offen
    """)
    a.branch("s_branch", "K1_EPI")
    a.label("K1_VEPI")
    a(f"""
    v_max3_f32 v16, |v{T5}|, |v{T5+1}|, |v{T5+2}|
    v_max3_f32 v16, v16, |v{T5+3}|, |v{T6}|
    v_max3_f32 v16, v16, |v{T6+1}|, |v{T6+2}|
    v_max_f32 v16, v16, |v{T6+3}|
    v_mov_b32 v17, 1.0
    v_cmp_eq_u32 vcc, 1, v6
    v_cndmask_b32 v{T6}, v{T6}, v17, vcc
    v_cvt_pk_bf16_f32 v12, v{T5}, v{T5+1}
    v_cvt_pk_bf16_f32 v13, v{T5+2}, v{T5+3}
    v_cvt_pk_bf16_f32 v14, v{T6}, v{T6+1}
    v_cvt_pk_bf16_f32 v15, v{T6+2}, v{T6+3}
    v_lshrrev_b32 v11, 3, v9
    v_mul_u32_u24 v11, {21*16}, v11
    v_lshl_add_u32 v11, v6, 6, v11
    v_and_b32 v17, 7, v9
    v_lshl_add_u32 v11, v17, 1, v11
    s_mul_i32 s30, s22, {2*21*16}
    s_add_u32 s30, s30, {VF}
    buffer_store_short v12, v11, s[12:15], s30 offen
    buffer_store_short_d16_hi v12, v11, s[12:15], s30 offen offset:16
    buffer_store_short v13, v11, s[12:15], s30 offen offset:32
    buffer_store_short_d16_hi v13, v11, s[12:15], s30 offen offset:48
    v_mov_b32 v17, {OOB}
    v_cmp_gt_u32 vcc, 2, v6
    v_cndmask_b32 v18, v17, v11, vcc
    v_cmp_eq_u32 vcc, 0, v6
    v_cndmask_b32 v19, v17, v11, vcc
    buffer_store_short v14, v18, s[12:15], s30 offen offset:256
    buffer_store_short_d16_hi v14, v19, s[12:15], s30 offen offset:272
    buffer_store_short v15, v19, s[12:15], s30 offen offset:288
    buffer_store_short_d16_hi v15, v19, s[12:15], s30 offen offset:304
    """)
    xor16_32_allreduce(a, 16, 17, "v_max_f32")
    row16_max(a, 16)
    a(f"""
    s_lshl_b32 s30, s22, 2
    s_add_u32 s30, s30, {VST}
    v_mov_b32 v17, {OOB}
    v_cmp_eq_u32 vcc, 0, v1
    v_cndmask_b32 v17, v17, v1, vcc
    buffer_store_dword v16, v17, s[12:15], s30 offen
    """)
    a.label("K1_EPI")
    stamp(a, 7)
    scl = 20 ** -0.5 * LOG2E
    a(f"""
    v_and_b32 v9, 15, v1
    v_mul_u32_u24 v10, 1280, v9
    v_lshl_add_u32 v10, v6, 3, v10
    s_mul_i32 s30, s22, {16*1280}
    s_mul_i32 s31, s21, 160
    s_add_u32 s30, s30, s31
    s_add_u32 s30, s30, {QB}
    """)
    for i in range(5):
        d = ACC + 4 * i
        for r in range(4):
            a(f"v_mul_f32 v{d+r}, {f32(scl)}, v{d+r}")
        a(f"v_cvt_pk_bf16_f32 v{d}, v{d}, v{d+1}")
        a(f"v_cvt_pk_bf16_f32 v{d+1}, v{d+2}, v{d+3}")
        a(f"buffer_store_dwordx2 v[{d}:{d+1}], v10, s[12:15], s30 offen offset:{32*i}")
    stamp(a, 8)
    stamp_flush(a, 1, 9, 20, 4)
    a.label("K1_END")
    a("s_endpgm")
    return name, kernel_desc(name, 232), f"grid=(256,1,1) block=(256,1,1) lds={K1_LDS}"


L_QL, L_QX, L_MT, L_FLAG, L_RED = 0x0000, 0x2000, 0x3000, 0x3400, 0x3500
L_TAB, L_OFR, L_PART = 0x3A00, 0x8000, 0xC000
K2_LDS = L_PART + 8 * 6144
SAFE_B2 = 96.0 * 96.0
SAFE_V = 65536.0


def gen_k2(a):
    name = "attn_kernel"
    kernel_header(a, name)
    KF, KX, VR, S, O, Q, OA, WO, OF = 8, 40, 56, 120, 152, 184, 196, 216, 236
    vLANE16, vQ, vQX, vOADD, vNRM, vOFW, vOFR = 2, 3, 4, 5, 6, 7, 244
    T0 = 245
    QF = lambda st: Q + 6 * st
    QXr = lambda st: Q + 6 * st + 4
    a("s_cmp_ge_u32 s2, 256")
    a.branch("s_cbranch_scc1", "K2_END")
    stamp(a, 0)
    a(f"""
    s_load_dwordx2 s[4:5], s[0:1], {A_WS}
    s_load_dwordx2 s[6:7], s[0:1], {A_X}
    v_and_b32 v1, 63, v0
    v_lshrrev_b32 v{T0}, 6, v0
    v_lshlrev_b32 v{vLANE16}, 4, v1
    """)
    a(f"v_readfirstlane_b32 s3, v{T0}")
    a(f"""
    v_bfe_u32 v{T0}, v1, 2, 3
    v_and_b32 v{T0+1}, 3, v1
    v_lshrrev_b32 v{T0+2}, 5, v1
    v_mul_u32_u24 v{T0}, 1280, v{T0}
    v_mul_u32_u24 v{T0+1}, 40, v{T0+1}
    v_add_u32 v{T0}, v{T0}, v{T0+1}
    v_lshl_add_u32 v{T0+3}, v{T0+2}, 4, v{T0}
    v_mov_b32 v{T0+4}, {OOB}
    v_cmp_eq_u32 vcc, 0, v{T0+2}
    v_cndmask_b32 v{T0+4}, v{T0+4}, v{T0}, vcc
    s_mul_i32 s20, s2, {8*1280}
    s_mul_i32 s21, s3, 160
    s_add_u32 s20, s20, s21
    s_add_u32 s20, s20, {QB}
    """)
    a(f"""
    v_and_b32 v{T0+5}, 19, v1
    v_bfe_u32 v{T0+6}, v1, 2, 1
    v_bfe_u32 v{T0+7}, v1, 3, 1
    v_lshl_or_b32 v{T0+5}, v{T0+6}, 3, v{T0+5}
    v_lshl_or_b32 v{T0+5}, v{T0+7}, 2, v{T0+5}
    v_mul_u32_u24 v{T0+5}, 48, v{T0+5}
    v_lshl_add_u32 v{T0+6}, v{T0+2}, 4, v{T0+5}
    v_lshl_add_u32 v{T0+7}, v{T0+2}, 3, v{T0+5}
    v_and_b32 v{T0+8}, 31, v1
    v_mul_u32_u24 v{T0+9}, 21, v{T0+2}
    v_add_u32 v{T0+9}, v{T0+9}, v{T0+8}
    v_lshlrev_b32 v{T0+9}, 4, v{T0+9}
    v_mov_b32 v{T0+10}, {OOB}
    v_cmp_gt_u32 vcc, 21, v{T0+8}
    v_cndmask_b32 v{T0+9}, v{T0+10}, v{T0+9}, vcc
    s_mul_i32 s22, s3, {256*48}
    s_add_u32 s22, s22, {KB}
    s_mul_i32 s23, s3, {16*672}
    s_add_u32 s23, s23, {VF}
    v_lshlrev_b32 v{T0+10}, 2, v1
    v_lshlrev_b32 v{vQ}, 4, v0
    s_waitcnt lgkmcnt(0)
    """)
    srd(a, 12, 4, WS_SIZE)
    srd(a, 16, 6, 2048 * 1280)
    a(f"""
    buffer_load_dwordx4 v[{QF(0)}:{QF(0)+3}], v{T0+3}, s[12:15], s20 offen
    buffer_load_dwordx2 v[{QXr(0)}:{QXr(0)+1}], v{T0+4}, s[12:15], s20 offen offset:32
    s_mov_b32 s24, {KST}
    buffer_load_dword v{OA}, v{T0+10}, s[12:15], s24 offen
    buffer_load_dword v{OA+1}, v{T0+10}, s[12:15], s24 offen offset:256
    buffer_load_dword v{OA+2}, v{T0+10}, s[12:15], s24 offen offset:512
    buffer_load_dword v{OA+3}, v{T0+10}, s[12:15], s24 offen offset:768
    """)
    for p in range(4):
        a(f"s_mov_b32 s24, {MODP + p*15360 + 1280*4}")
        a(f"buffer_load_dwordx4 v[{S+4*p}:{S+4*p+3}], v{vQ}, s[12:15], s24 offen")
    for kb in range(8):
        a(f"buffer_load_dwordx4 v[{KF+4*kb}:{KF+4*kb+3}], v{T0+6}, s[12:15], s22 offen")
        a(f"buffer_load_dwordx2 v[{KX+2*kb}:{KX+2*kb+1}], v{T0+7}, s[12:15], s22 offen offset:32")
        a(f"buffer_load_dwordx4 v[{VR+8*kb}:{VR+8*kb+3}], v{T0+9}, s[12:15], s23 offen")
        a(f"buffer_load_dwordx4 v[{VR+8*kb+4}:{VR+8*kb+7}], v{T0+9}, s[12:15], s23 offen offset:672")
        if kb < 7:
            a(f"s_add_u32 s22, s22, {32*48}")
            a(f"s_add_u32 s23, s23, {2*672}")
    a(f"""
    v_mov_b32 v{O+4}, 0xff800000
    v_lshlrev_b32 v{T0}, 2, v0
    v_cmp_gt_u32 vcc, 256, v0
    s_and_saveexec_b64 s[26:27], vcc
    ds_write_b32 v{T0}, v{O+4} offset:{L_MT}
    s_mov_b64 exec, s[26:27]
    """)
    a(f"s_mul_i32 s60, s3, {5*20480}")
    a(f"s_add_u32 s60, s60, {WOF}")
    for i in range(1, 5):
        a(f"s_add_u32 s{60+i}, s60, {i*20480}")
    a(f"""
    v_and_b32 v{T0}, 31, v1
    v_lshlrev_b32 v{T0}, 4, v{T0}
    v_lshl_add_u32 v{vOADD}, v{T0+2}, 9, v{T0}
    s_mul_i32 s24, s3, 6144
    s_add_u32 s24, s24, {L_PART}
    v_add_u32 v{vOADD}, s24, v{vOADD}
    v_lshrrev_b32 v{T0}, 4, v1
    v_and_b32 v{T0+1}, 7, v1
    v_bfe_u32 v{T0+3}, v1, 3, 1
    v_lshrrev_b32 v{T0+4}, 1, v{T0}
    v_and_b32 v{T0+5}, 1, v{T0}
    v_mul_u32_u24 v{T0+4}, 3072, v{T0+4}
    v_lshl_add_u32 v{T0+4}, v{T0+1}, 6, v{T0+4}
    v_mul_u32_u24 v{T0+5}, 10, v{T0+5}
    v_add_u32 v{T0+5}, v{T0+5}, v{T0+3}
    s_lshl_b32 s24, s3, 1
    v_add_u32 v{T0+5}, s24, v{T0+5}
    v_mul_u32_u24 v{T0+8}, 52, v{T0+5}
    v_lshrrev_b32 v{T0+8}, 8, v{T0+8}
    v_lshl_add_u32 v{T0+4}, v{T0+8}, 4, v{T0+4}
    v_mul_u32_u24 v{T0+8}, 5, v{T0+8}
    v_sub_u32 v{T0+5}, v{T0+5}, v{T0+8}
    v_lshl_add_u32 v{vNRM}, v{T0+5}, 9, v{T0+4}
    v_add_u32 v{vNRM}, {L_PART}, v{vNRM}
    v_add_u32 v{T0+8}, {L_PART+5*512}, v{T0+4}
    v_lshl_add_u32 v{vOFW}, v{T0}, 4, v{T0+1}
    v_lshlrev_b32 v{vOFW}, 4, v{vOFW}
    v_lshl_add_u32 v{vOFW}, v{T0+3}, 3, v{vOFW}
    s_lshl_b32 s24, s3, 10
    v_add_u32 v{vOFW}, s24, v{vOFW}
    v_add_u32 v{vOFW}, {L_OFR}, v{vOFW}
    v_add_u32 v{vOFR}, {L_OFR}, v{vLANE16}
    """)
    vNL = T0 + 8
    a(f"""
    s_lshl_b32 s24, s3, 10
    v_add_u32 v{T0}, s24, v{vLANE16}
    s_lshl_b32 s24, s3, 9
    v_lshlrev_b32 v{T0+1}, 3, v1
    v_add_u32 v{T0+1}, s24, v{T0+1}
    s_waitcnt vmcnt(40)
    ds_write_b128 v{T0}, v[{QF(0)}:{QF(0)+3}] offset:{L_QL}
    ds_write_b64 v{T0+1}, v[{QXr(0)}:{QXr(0)+1}] offset:{L_QX}
    v_dot2_f32_bf16 v{T0+3}, v{QF(0)}, v{QF(0)}, 0
    v_dot2_f32_bf16 v{T0+3}, v{QF(0)+1}, v{QF(0)+1}, v{T0+3}
    v_dot2_f32_bf16 v{T0+3}, v{QF(0)+2}, v{QF(0)+2}, v{T0+3}
    v_dot2_f32_bf16 v{T0+3}, v{QF(0)+3}, v{QF(0)+3}, v{T0+3}
    v_dot2_f32_bf16 v{T0+3}, v{QXr(0)}, v{QXr(0)}, v{T0+3}
    v_dot2_f32_bf16 v{T0+3}, v{QXr(0)+1}, v{QXr(0)+1}, v{T0+3}
    v_mov_b32 v{T0+4}, v{T0+3}
    v_permlane32_swap_b32 v{T0+3}, v{T0+4}
    v_add_f32 v{T0+3}, v{T0+3}, v{T0+4}
    """)
    row16_max(a, T0 + 3)
    a(f"""
    v_mov_b32 v{T0+4}, v{T0+3}
    v_permlane16_swap_b32 v{T0+3}, v{T0+4}
    v_max_f32 v{T0+3}, v{T0+3}, v{T0+4}
    s_waitcnt vmcnt(36)
    v_max_f32 v{OA}, v{OA}, v{OA+1}
    v_max_f32 v{OA+2}, v{OA+2}, v{OA+3}
    v_mul_f32 v{OA}, v{OA}, v{T0+3}
    v_mov_b32 v{T0+4}, {f32(SAFE_B2)}
    v_mov_b32 v{T0+5}, {f32(SAFE_V)}
    v_cmp_nle_f32 vcc, v{OA}, v{T0+4}
    v_cmp_nle_f32 s[26:27], v{OA+2}, v{T0+5}
    s_or_b64 vcc, vcc, s[26:27]
    s_cmp_lg_u64 vcc, 0
    s_cselect_b32 s24, 1, 0
    v_mov_b32 v{T0+4}, s24
    s_lshl_b32 s24, s3, 2
    v_mov_b32 v{T0+5}, s24
    ds_write_b32 v{T0+5}, v{T0+4} offset:{L_FLAG}
    s_waitcnt vmcnt(32)
    """)
    for e in range(4):
        a(f"v_add_f32 v{S+e}, v{S+e}, v{S+4+e}")
        a(f"v_add_f32 v{S+8+e}, v{S+8+e}, v{S+12+e}")
    for e in range(4):
        a(f"v_add_f32 v{S+e}, v{S+e}, v{S+8+e}")
    for e in range(4):
        bf16_round(a, S + e, S + e)
    a(f"v_cmp_le_u32 vcc, 320, v0")
    a(f"v_cndmask_b32 v{S+4}, 0, 1.0, vcc")
    for e in range(4):
        a(f"v_add_f32 v{S+e}, v{S+4}, v{S+e}")
    for e in range(4):
        bf16_round(a, S + e, S + e)
    a(f"""
    v_cmp_gt_u32 vcc, 480, v0
    s_and_saveexec_b64 s[26:27], vcc
    ds_write_b128 v{vQ}, v[{S}:{S+3}] offset:{L_TAB}
    s_mov_b64 exec, s[26:27]
    v_mov_b32 v{vQ}, v{vLANE16}
    v_lshlrev_b32 v{vQX}, 3, v1
    v_and_b32 v{T0}, 7, v1
    v_lshlrev_b32 v{T0}, 2, v{T0}
    s_waitcnt lgkmcnt(0)
    s_barrier
    ds_read_b32 v{T0+1}, v{T0} offset:{L_FLAG}
    ds_read_b128 v[{QF(0)}:{QF(0)+3}], v{vQ} offset:{L_QL}
    ds_read_b64 v[{QXr(0)}:{QXr(0)+1}], v{vQX} offset:{L_QX}
    s_waitcnt lgkmcnt(2)
    v_cmp_ne_u32 vcc, 0, v{T0+1}
    s_cmp_eq_u64 vcc, 0
    """)
    a.branch("s_cbranch_scc1", "K2_MAIN")
    a("s_waitcnt vmcnt(0) lgkmcnt(0)")
    a(f"""
    s_mov_b32 s30, 0
    v_and_b32 v{T0}, 31, v1
    v_lshlrev_b32 v{T0}, 2, v{T0}
    """)

    def slow_body(b):
        b(f"""
        ds_read_b128 v[{QF(0)}:{QF(0)+3}], v{vQ} offset:{L_QL}
        ds_read_b64 v[{QXr(0)}:{QXr(0)+1}], v{vQX} offset:{L_QX}
        v_mov_b32 v{T0+1}, 0xff800000
        s_waitcnt lgkmcnt(0)
        """)
        for kb in range(8):
            b(f"v_mfma_f32_32x32x16_bf16 v[{S}:{S+15}], v[{KF+4*kb}:{KF+4*kb+3}], v[{QF(0)}:{QF(0)+3}], 0")
            b(f"v_mfma_f32_32x32x8_bf16 v[{S}:{S+15}], v[{KX+2*kb}:{KX+2*kb+1}], v[{QXr(0)}:{QXr(0)+1}], v[{S}:{S+15}]")
            for r in range(0, 16, 2):
                b(f"v_max3_f32 v{T0+1}, v{T0+1}, v{S+r}, v{S+r+1}")
        b(f"""
        ds_max_f32 v{T0}, v{T0+1} offset:{L_MT}
        v_add_u32 v{T0}, 128, v{T0}
        v_add_u32 v{vQ}, 1024, v{vQ}
        v_add_u32 v{vQX}, 512, v{vQX}
        s_add_u32 s30, s30, 1
        s_cmp_lt_u32 s30, 8
        """)
    a.loop("K2_SLOW", slow_body, ["s_cbranch_scc1 K2_SLOW"])
    a(f"""
    s_waitcnt lgkmcnt(0)
    s_barrier
    v_lshlrev_b32 v{T0}, 2, v0
    v_cmp_gt_u32 vcc, 256, v0
    s_and_saveexec_b64 s[26:27], vcc
    ds_read_b32 v{T0+1}, v{T0} offset:{L_MT}
    v_lshrrev_b32 v{T0+3}, 5, v0
    v_and_b32 v{T0+4}, 31, v0
    v_lshlrev_b32 v{T0+3}, 9, v{T0+3}
    v_lshl_add_u32 v{T0+3}, v{T0+4}, 3, v{T0+3}
    s_waitcnt lgkmcnt(0)
    v_sub_f32 v{T0+1}, 0, v{T0+1}
    v_and_b32 v{T0+4}, 0xffff0000, v{T0+1}
    v_sub_f32 v{T0+1}, v{T0+1}, v{T0+4}
    v_and_b32 v{T0+5}, 0xffff0000, v{T0+1}
    v_sub_f32 v{T0+1}, v{T0+1}, v{T0+5}
    v_cvt_pk_bf16_f32 v{T0+6}, v{T0+4}, v{T0+5}
    v_cvt_pk_bf16_f32 v{T0+7}, v{T0+1}, 0
    ds_write_b32 v{T0+3}, v{T0+6} offset:{L_QX+256}
    ds_write_b32 v{T0+3}, v{T0+7} offset:{L_QX+260}
    s_mov_b64 exec, s[26:27]
    v_mov_b32 v{vQ}, v{vLANE16}
    v_lshlrev_b32 v{vQX}, 3, v1
    s_waitcnt lgkmcnt(0)
    s_barrier
    ds_read_b128 v[{QF(0)}:{QF(0)+3}], v{vQ} offset:{L_QL}
    ds_read_b64 v[{QXr(0)}:{QXr(0)+1}], v{vQX} offset:{L_QX}
    """)
    a.label("K2_MAIN")

    def qk(b, kb, qs, sb):
        sr = S + 16 * sb
        m1 = f"v_mfma_f32_32x32x16_bf16 v[{sr}:{sr+15}], v[{KF+4*kb}:{KF+4*kb+3}], v[{QF(qs)}:{QF(qs)+3}], 0"
        m2 = f"v_mfma_f32_32x32x8_bf16 v[{sr}:{sr+15}], v[{KX+2*kb}:{KX+2*kb+1}], v[{QXr(qs)}:{QXr(qs)+1}], v[{sr}:{sr+15}]"
        return m1, m2

    def period(b, tl, kb, extras, do_prev_pv2=True, do_next_qk=True):
        sr = S + 16 * (kb & 1)
        pr = S + 16 * ((kb + 1) & 1)
        ob = O + 16 * tl
        E = lambda i: f"v_exp_f32 v{sr+i}, v{sr+i}"
        C = lambda p: f"v_cvt_pk_bf16_f32 v{sr+p}, v{sr+2*p}, v{sr+2*p+1}"
        if kb > 0:
            pob, pkb = ob, kb - 1
        else:
            pob, pkb = O + 16 * (1 - tl), 7
        PV2 = f"v_mfma_f32_32x32x16_bf16 v[{pob}:{pob+15}], v[{VR+8*pkb+4}:{VR+8*pkb+7}], v[{pr+4}:{pr+7}], v[{pob}:{pob+15}]"
        cin = "0" if kb == 0 else f"v[{ob}:{ob+15}]"
        PV1 = f"v_mfma_f32_32x32x16_bf16 v[{ob}:{ob+15}], v[{VR+8*kb}:{VR+8*kb+3}], v[{sr}:{sr+3}], {cin}"
        if kb < 7:
            QK1, QK2 = qk(b, kb + 1, tl, (kb + 1) & 1)
        else:
            QK1, QK2 = qk(b, 0, 1 - tl, 0)
        seq = [E(0), E(1), "PV2", E(2), E(3), E(4), E(5), "QK1", E(6), E(7), C(0), C(1), C(2), "QK2", C(3),
               E(8), E(9), E(10), E(11), "PV1", E(12), E(13), C(4), C(5), E(14), E(15), C(6), C(7)]
        for i, ins in enumerate(seq):
            for x in extras.get(i, []):
                if callable(x):
                    x(b)
                else:
                    b(x)
            if ins == "PV2":
                if do_prev_pv2: b(PV2)
            elif ins == "PV1":
                b(PV1)
            elif ins == "QK1":
                if do_next_qk: b(QK1)
            elif ins == "QK2":
                if do_next_qk: b(QK2)
            else:
                b(ins)
        for x in extras.get(len(seq), []):
            if callable(x):
                x(b)
            else:
                b(x)

    def oadds(ob, tau):
        return [f"ds_write_b128 v{vOADD}, v[{ob+4*q_}:{ob+4*q_+3}] offset:{tau*3072 + q_*1024}" for q_ in range(3)]

    R1 = O + 16

    def guarded(fn):
        def g(b):
            lab = b.newlabel("K2_NRM")
            b("s_cmp_ge_u32 s3, 5")
            b.branch("s_cbranch_scc1", lab)
            fn(b)
            b.label(lab)
        return g

    def nrmA(b):
        for w_ in range(4):
            b(f"ds_read_b128 v[{R1+4*w_}:{R1+4*w_+3}], v{vNRM} offset:{w_*6144}")
        for w_ in range(8):
            b(f"ds_read_b32 v{OF+w_}, v{vNL} offset:{w_*6144}")

    def nrmB(b):
        b("s_waitcnt lgkmcnt(0)")
        b(f"v_pk_add_f32 v[{R1}:{R1+1}], v[{R1}:{R1+1}], v[{R1+4}:{R1+5}]")
        b(f"v_pk_add_f32 v[{R1+2}:{R1+3}], v[{R1+2}:{R1+3}], v[{R1+6}:{R1+7}]")
        b(f"v_pk_add_f32 v[{R1+8}:{R1+9}], v[{R1+8}:{R1+9}], v[{R1+12}:{R1+13}]")
        b(f"v_pk_add_f32 v[{R1+10}:{R1+11}], v[{R1+10}:{R1+11}], v[{R1+14}:{R1+15}]")
        b(f"v_pk_add_f32 v[{R1}:{R1+1}], v[{R1}:{R1+1}], v[{R1+8}:{R1+9}]")
        b(f"v_pk_add_f32 v[{R1+2}:{R1+3}], v[{R1+2}:{R1+3}], v[{R1+10}:{R1+11}]")
        for w_ in range(3):
            b(f"ds_read_b128 v[{R1+4+4*w_}:{R1+7+4*w_}], v{vNRM} offset:{(4+w_)*6144}")
        b(f"ds_read_b128 v[{T0+1}:{T0+4}], v{vNRM} offset:{7*6144}")
        b(f"v_pk_add_f32 v[{OF}:{OF+1}], v[{OF}:{OF+1}], v[{OF+2}:{OF+3}]")
        b(f"v_pk_add_f32 v[{OF+4}:{OF+5}], v[{OF+4}:{OF+5}], v[{OF+6}:{OF+7}]")
        b(f"v_pk_add_f32 v[{OF}:{OF+1}], v[{OF}:{OF+1}], v[{OF+4}:{OF+5}]")
        b(f"v_add_f32 v{OF}, v{OF}, v{OF+1}")
        b(f"v_rcp_f32 v{OF}, v{OF}")

    def nrmC(b):
        b("s_waitcnt lgkmcnt(0)")
        b(f"v_pk_add_f32 v[{R1+4}:{R1+5}], v[{R1+4}:{R1+5}], v[{R1+8}:{R1+9}]")
        b(f"v_pk_add_f32 v[{R1+6}:{R1+7}], v[{R1+6}:{R1+7}], v[{R1+10}:{R1+11}]")
        b(f"v_pk_add_f32 v[{R1+12}:{R1+13}], v[{R1+12}:{R1+13}], v[{T0+1}:{T0+2}]")
        b(f"v_pk_add_f32 v[{R1+14}:{R1+15}], v[{R1+14}:{R1+15}], v[{T0+3}:{T0+4}]")
        b(f"v_pk_add_f32 v[{R1}:{R1+1}], v[{R1}:{R1+1}], v[{R1+4}:{R1+5}]")
        b(f"v_pk_add_f32 v[{R1+2}:{R1+3}], v[{R1+2}:{R1+3}], v[{R1+6}:{R1+7}]")
        b(f"v_pk_add_f32 v[{R1}:{R1+1}], v[{R1}:{R1+1}], v[{R1+12}:{R1+13}]")
        b(f"v_pk_add_f32 v[{R1+2}:{R1+3}], v[{R1+2}:{R1+3}], v[{R1+14}:{R1+15}]")
        for e in range(4):
            b(f"v_mul_f32 v{R1+e}, v{R1+e}, v{OF}")
        b(f"v_cvt_pk_bf16_f32 v{R1}, v{R1}, v{R1+1}")
        b(f"v_cvt_pk_bf16_f32 v{R1+1}, v{R1+2}, v{R1+3}")
        b(f"ds_write_b64 v{vOFW}, v[{R1}:{R1+1}]")

    def normalizer(b):
        guarded(lambda x: (nrmA(x), nrmB(x), nrmC(x)))(b)

    def oproj(i, sp, first, load_next=True, wait=4):
        d = OA + 4 * i
        w_ = WO + 4 * i
        of = OF + 4 * (sp & 1)
        cin = "0" if first else f"v[{d}:{d+3}]"
        r_ = [f"s_waitcnt vmcnt({wait})",
              f"v_mfma_f32_16x16x32_bf16 v[{d}:{d+3}], v[{w_}:{w_+3}], v[{of}:{of+3}], {cin}"]
        if "nowo" in OPT:
            r_ = r_[1:]
        if load_next and "nowo" not in OPT:
            r_ += [f"buffer_load_dwordx4 v[{w_}:{w_+3}], v{vLANE16}, s[12:15], s{60+i} offen",
                   f"s_add_u32 s{60+i}, s{60+i}, 1024"]
        return r_

    def add_extra(ex, per, slot, instrs):
        ex.setdefault(per, {}).setdefault(slot, []).extend(instrs)

    def pair_body(b, first):
        ex = {}
        if not first:
            add_extra(ex, 0, 16, oadds(O + 16, 1))
            add_extra(ex, 1, 0, ["s_waitcnt lgkmcnt(0)", "s_barrier", guarded(nrmA)])
            add_extra(ex, 1, 15, [guarded(nrmB)])
            add_extra(ex, 2, 0, [guarded(nrmC)])
            add_extra(ex, 3, 0, ["s_waitcnt lgkmcnt(0)", "s_barrier",
                                 f"ds_read_b128 v[{OF}:{OF+3}], v{vOFR}",
                                 f"v_xor_b32 v{vOFW}, 0x2000, v{vOFW}"])
            k = 0
            for per in range(3, 16):
                for slot in (22, 26):
                    if k >= 25: break
                    sp, i = divmod(k, 5)
                    ins = []
                    if i == 0:
                        ins.append("s_waitcnt lgkmcnt(0)")
                    ins += oproj(i, sp, False)
                    if i == 0 and sp < 4:
                        ins.append(f"ds_read_b128 v[{OF+4*((sp+1)&1)}:{OF+4*((sp+1)&1)+3}], v{vOFR} offset:{(sp+1)*1024}")
                    add_extra(ex, per, slot, ins)
                    k += 1
            add_extra(ex, 15, 28, [f"v_xor_b32 v{vOFR}, 0x2000, v{vOFR}"])
        else:
            for kb in range(8):
                if kb < 7:
                    add_extra(ex, kb, 7, [f"s_waitcnt vmcnt({32-4*(kb+1)-2})"])
                add_extra(ex, kb, 19, [f"s_waitcnt vmcnt({32-4*kb-3})"])
                add_extra(ex, kb + 1, 2, [f"s_waitcnt vmcnt({32-4*kb-4})"])
            for i in range(5):
                add_extra(ex, 10 + i, 22, [f"buffer_load_dwordx4 v[{WO+4*i}:{WO+4*i+3}], v{vLANE16}, s[12:15], s{60+i} offen",
                                           f"s_add_u32 s{60+i}, s{60+i}, 1024"])
                add_extra(ex, 10 + i, 26, [f"v_mov_b32 v{OA+4*i+r}, 0" for r in range(4)])
        add_extra(ex, 8, 16, oadds(O, 0))
        add_extra(ex, 2, 4, [f"ds_read_b128 v[{QF(1)}:{QF(1)+3}], v{vQ} offset:{L_QL+1024}",
                             f"ds_read_b64 v[{QXr(1)}:{QXr(1)+1}], v{vQX} offset:{L_QX+512}"])
        add_extra(ex, 7, 7, ["s_waitcnt lgkmcnt(0)"])
        add_extra(ex, 10, 4, [f"ds_read_b128 v[{QF(0)}:{QF(0)+3}], v{vQ} offset:{L_QL+2048}",
                              f"ds_read_b64 v[{QXr(0)}:{QXr(0)+1}], v{vQX} offset:{L_QX+1024}",
                              f"v_add_u32 v{vQ}, 2048, v{vQ}", f"v_add_u32 v{vQX}, 1024, v{vQX}"])
        add_extra(ex, 15, 7, ["s_waitcnt lgkmcnt(0)"])
        for per in range(16):
            tl, kb = divmod(per, 8)
            period(b, tl, kb, ex.get(per, {}), do_prev_pv2=not (first and per == 0))

    a("s_waitcnt vmcnt(30) lgkmcnt(0)")
    stamp(a, 1)
    m1, m2 = qk(a, 0, 0, 0)
    a(m1); a(m2)
    pair_body(a, True)
    stamp(a, 2)
    a("s_mov_b32 s30, 1")

    def loop_body(b):
        pair_body(b, False)
        b("s_add_u32 s30, s30, 1")
        b("s_cmp_lt_u32 s30, 4")
    a.loop("K2_LOOP", loop_body, ["s_cbranch_scc1 K2_LOOP"])
    stamp(a, 3)
    XR, GA, G2, SB = KF, KF + 12, KF + 32, KF + 52
    tq, tg, tx, tt = 80, 81, 82, 83
    pr = S + 16
    a(f"v_mfma_f32_32x32x16_bf16 v[{O+16}:{O+31}], v[{VR+60}:{VR+63}], v[{pr+4}:{pr+7}], v[{O+16}:{O+31}]")
    a(f"""
    v_and_b32 v{tq}, 7, v1
    v_lshrrev_b32 v{tg}, 4, v1
    v_mul_u32_u24 v{tx}, 1280, v{tq}
    v_lshl_add_u32 v{tx}, v{tg}, 3, v{tx}
    s_mul_i32 s20, s2, {8*1280}
    s_mul_i32 s21, s3, 160
    s_add_u32 s20, s20, s21
    """)
    for i in range(5):
        a(f"buffer_load_dwordx2 v[{XR+2*i}:{XR+2*i+1}], v{tx}, s[16:19], s20 offen offset:{32*i}")
    a(f"""
    s_mul_i32 s21, s3, 320
    v_lshl_add_u32 v{tt}, v{tg}, 4, s21
    """)
    for i in range(5):
        a(f"ds_read_b128 v[{GA+4*i}:{GA+4*i+3}], v{tt} offset:{L_TAB + 64*i}")
    for x in oadds(O + 16, 1):
        a(x)
    a("s_waitcnt lgkmcnt(0)")
    a("s_barrier")
    normalizer(a)
    for i in range(5):
        a(f"ds_read_b128 v[{SB+4*i}:{SB+4*i+3}], v{tt} offset:{L_TAB + 2560 + 64*i}")
        a(f"ds_read_b128 v[{G2+4*i}:{G2+4*i+3}], v{tt} offset:{L_TAB + 5120 + 64*i}")
    a("s_waitcnt lgkmcnt(0)")
    a("s_barrier")
    for sp in range(5):
        a(f"ds_read_b128 v[{S+4*sp}:{S+4*sp+3}], v{vOFR} offset:{sp*1024}")
    WO2 = 84
    regs_free = [84 + 4 * k for k in range(9)] + [O + 4 * k for k in range(8)] + [S + 20 + 4 * k for k in range(3)]
    assert len(regs_free) == 20
    k = 0
    for sp in range(1, 5):
        for i in range(5):
            r = regs_free[k]; k += 1
            a(f"buffer_load_dwordx4 v[{r}:{r+3}], v{vLANE16}, s[12:15], s{60+i} offen offset:{(sp-1)*1024}")
    a("s_waitcnt lgkmcnt(0)")
    k = 0
    for sp in range(5):
        for i in range(5):
            d = OA + 4 * i
            if sp == 0:
                r = WO + 4 * i
                if i == 0: a("s_waitcnt vmcnt(25)")
            else:
                r = regs_free[k]
                a(f"s_waitcnt vmcnt({19-k})")
                k += 1
            a(f"v_mfma_f32_16x16x32_bf16 v[{d}:{d+3}], v[{r}:{r+3}], v[{S+4*sp}:{S+4*sp+3}], v[{d}:{d+3}]")
    stamp(a, 4)
    X = 84
    for i in range(5):
        a(f"v_lshlrev_b32 v{X+4*i}, 16, v{XR+2*i}")
        a(f"v_and_b32 v{X+4*i+1}, 0xffff0000, v{XR+2*i}")
        a(f"v_lshlrev_b32 v{X+4*i+2}, 16, v{XR+2*i+1}")
        a(f"v_and_b32 v{X+4*i+3}, 0xffff0000, v{XR+2*i+1}")
    for e in range(20):
        a(f"v_fmac_f32 v{X+e}, v{GA+e}, v{OA+e}")
    for p in range(10):
        a(f"v_cvt_pk_bf16_f32 v{XR+p}, v{X+2*p}, v{X+2*p+1}")
    a(f"""
    v_mov_b32 v{T0+4}, {OOB}
    v_and_b32 v{T0+5}, 15, v1
    v_cmp_gt_u32 vcc, 8, v{T0+5}
    v_cndmask_b32 v{tx}, v{T0+4}, v{tx}, vcc
    s_add_u32 s20, s20, {X1}
    """)
    for i in range(5):
        a(f"buffer_store_dwordx2 v[{XR+2*i}:{XR+2*i+1}], v{tx}, s[12:15], s20 offen offset:{32*i}")
    for p in range(10):
        a(f"v_lshlrev_b32 v{X+2*p}, 16, v{XR+p}")
        a(f"v_and_b32 v{X+2*p+1}, 0xffff0000, v{XR+p}")
    a(f"v_cmp_gt_u32 s[34:35], 8, v{T0+5}")
    a(f"v_lshlrev_b32 v{T0+5}, 3, v{tq}")
    a(f"s_lshl_b32 s21, s3, 6")
    a(f"v_add_u32 v{T0+6}, s21, v{T0+5}")
    a(f"v_cmp_gt_u32 s[28:29], 8, v1")

    def ln_round(rnd, src):
        s1, s2, t = T0 + 9, T0 + 10, T0 + 7
        a(f"v_add_f32 v{s1}, v{src}, v{src+1}")
        a(f"v_mul_f32 v{s2}, v{src}, v{src}")
        for e in range(1, 20):
            if e > 1:
                a(f"v_add_f32 v{s1}, v{s1}, v{src+e}")
            a(f"v_fmac_f32 v{s2}, v{src+e}, v{src+e}")
        xor16_32_allreduce(a, s1, t, "v_add_f32")
        xor16_32_allreduce(a, s2, t, "v_add_f32")
        a(f"""
        s_mov_b64 exec, s[28:29]
        ds_write_b64 v{T0+6}, v[{s1}:{s2}] offset:{L_RED + 512*rnd}
        s_mov_b64 exec, -1
        s_waitcnt lgkmcnt(0)
        s_barrier
        """)
        for w_ in range(8):
            a(f"ds_read_b64 v[{S+2*w_}:{S+2*w_+1}], v{T0+5} offset:{L_RED + 512*rnd + 64*w_}")
        a("s_waitcnt lgkmcnt(0)")
        for st in (4, 2, 1):
            for w_ in range(st):
                a(f"v_pk_add_f32 v[{S+2*w_}:{S+2*w_+1}], v[{S+2*w_}:{S+2*w_+1}], v[{S+2*w_+2*st}:{S+2*w_+2*st+1}]")
        a(f"""
        v_mov_b32 v{s1}, v{S}
        v_mov_b32 v{s2}, v{S+1}
        v_mul_f32 v{s1}, {f32(1.0/640)}, v{s1}
        v_mul_f32 v{s2}, {f32(1.0/640)}, v{s2}
        v_fma_f32 v{s2}, -v{s1}, v{s1}, v{s2}
        v_max_f32 v{s2}, 0, v{s2}
        """)
        bf16_round(a, s1, s1)
        bf16_round(a, s2, s2)
        a(f"v_add_f32 v{s2}, {f32(1e-5)}, v{s2}")
        bf16_round(a, s2, s2)
        a(f"v_sqrt_f32 v{s2}, v{s2}")
        bf16_round(a, s2, s2)
        a(f"v_rcp_f32 v{s2}, v{s2}")
        a(f"v_mul_f32 v{s1}, -v{s1}, v{s2}")

    ln_round(0, X)
    for e in range(20):
        a(f"v_fma_f32 v{X+e}, v{X+e}, v{T0+10}, v{T0+9}")
    for e in range(20):
        a(f"v_fma_f32 v{X+e}, v{X+e}, v{G2+e}, v{SB+e}")
    ln_round(1, X)
    for e in range(20):
        a(f"v_fma_f32 v{X+e}, v{X+e}, v{T0+10}, v{T0+9}")
    for p in range(10):
        a(f"v_cvt_pk_bf16_f32 v{XR+p}, v{X+2*p}, v{X+2*p+1}")
    a(f"""
    s_and_b32 s21, s2, 1
    s_lshl_b32 s21, s21, 3
    v_add_u32 v{tx}, s21, v{tq}
    v_lshl_add_u32 v{tx}, v{tg}, 4, v{tx}
    v_lshlrev_b32 v{tx}, 4, v{tx}
    v_cndmask_b32 v{tx}, v{T0+4}, v{tx}, s[34:35]
    s_lshr_b32 s20, s2, 1
    s_mul_i32 s20, s20, 20480
    s_add_u32 s20, s20, {YF}
    s_mul_i32 s21, s3, 5
    """)
    for i in range(5):
        a(f"""
        s_add_u32 s22, s21, {i}
        s_lshr_b32 s23, s22, 1
        s_lshl_b32 s23, s23, 10
        s_and_b32 s22, s22, 1
        s_lshl_b32 s22, s22, 3
        s_add_u32 s23, s23, s22
        s_add_u32 s23, s23, s20
        buffer_store_dwordx2 v[{XR+2*i}:{XR+2*i+1}], v{tx}, s[12:15], s23 offen
        """)
    stamp(a, 5)
    stamp_flush(a, 2, 6, 120, 8)
    a.label("K2_END")
    a("s_endpgm")
    return name, kernel_desc(name, 256), f"grid=(256,1,1) block=(512,1,1) lds={K2_LDS}"


from gen_mlp import gen_k3, gen_k4
KERNELS = [gen_k1, gen_k2, gen_k3, gen_k4]
```

```python
import sys, os, struct
sys.path.insert(0, os.path.dirname(os.path.abspath(__file__)))
from asmdsl import Asm

WS_SIZE = 268435456
MODP = 0x000000
KST = 0x014000
VST = 0x014200
KB = 0x020000
VF = 0x040000
WKVF = 0x060000
WQF = 0x100000
WOF = 0x200000
W1F = 0x300000
W2F = 0x600000
NF = 0x900000
QB = 0xC00000
X1 = 0xF00000
YF = 0x1200000
HF = 0x1500000

A_X, A_WQ, A_WK, A_WV, A_WO, A_BX, A_W1, A_B1, A_W2, A_B2, A_C, A_WMOD, A_OUT, A_DBG, A_WS = [8 * i for i in range(15)]

LOG2E = 1.4426950408889634
STAMP = 0x4000000
OPT = set(os.environ.get("GENOPT", "").split(","))


def stamp(a, i):
    if "stamp" not in OPT:
        return
    a("s_waitcnt lgkmcnt(0)")
    a("s_memtime s[78:79]")
    a("s_waitcnt lgkmcnt(0)")
    a(f"s_mov_b32 s{80+i}, s78")


def stamp_flush(a, kid, nst, vtmp, nwaves):
    if "stamp" not in OPT:
        return
    a(f"""
    s_mul_i32 s76, s2, {nwaves}
    s_add_u32 s76, s76, s3
    s_lshl_b32 s76, s76, 6
    s_add_u32 s76, s76, {STAMP + kid * 0x100000}
    v_mov_b32 v{vtmp+1}, 0
    """)
    for i in range(nst):
        a(f"v_mov_b32 v{vtmp}, s{80+i}")
        a(f"buffer_store_dword v{vtmp}, v{vtmp+1}, s[12:15], s76 offen offset:{4*i}")
        a("s_nop 1")


def f32(x):
    return "0x%08x" % struct.unpack("<I", struct.pack("<f", x))[0]


def srd(a, d, ptr, size):
    a(f"""
    s_mov_b32 s{d}, s{ptr}
    s_and_b32 s{d+1}, s{ptr+1}, 0xffff
    s_mov_b32 s{d+2}, {size}
    s_mov_b32 s{d+3}, 0x00020000
    """)


def kernel_header(a, name):
    a.raw(f".globl {name}")
    a.raw(".p2align 8")
    a.raw(f".type {name},@function")
    a.raw(f"{name}:")
    a.hists = [[]]


def kernel_desc(name, vgpr, sgpr=102, accum=None):
    if accum is None:
        accum = (vgpr + 3) // 4 * 4
    return f""".amdhsa_kernel {name}
  .amdhsa_next_free_vgpr {vgpr}
  .amdhsa_next_free_sgpr {sgpr}
  .amdhsa_accum_offset {accum}
  .amdhsa_group_segment_fixed_size 0
  .amdhsa_kernarg_size 120
  .amdhsa_user_sgpr_count 2
  .amdhsa_user_sgpr_kernarg_segment_ptr 1
  .amdhsa_system_sgpr_workgroup_id_x 1
  .amdhsa_float_denorm_mode_32 3
  .amdhsa_float_denorm_mode_16_64 3
.end_amdhsa_kernel
"""


def bf16_round(a, dst, src):
    a(f"v_cvt_pk_bf16_f32 v{dst}, v{src}, v{src}")
    a(f"v_and_b32 v{dst}, 0xffff0000, v{dst}")


def row16_sum(a, v):
    for sh in (8, 4, 2, 1):
        a(f"v_add_f32_dpp v{v}, v{v}, v{v} row_ror:{sh} row_mask:0xf bank_mask:0xf")


K0_MOD, K0_LN, K0_SH, K0_KV = 240, 128, 92, 20
K0_NWG = K0_MOD + K0_LN + K0_SH + K0_KV
K0_LDS = 4 * 20480


def shuffle_job(a, srcsrd, stride, R, nks, kst, mode, dstbase, s_kb, s_nbk, s_ldsbase):
    a(f"""
    v_lshrrev_b32 v2, 3, v1
    v_and_b32 v3, 7, v1
    v_mul_u32_u24 v2, {stride}, v2
    v_lshl_add_u32 v2, v3, 4, v2
    s_mul_i32 s40, s{s_kb}, {R*stride}
    s_lshl_b32 s41, s{s_nbk}, 7
    s_add_u32 s40, s40, s41
    s_mov_b32 s41, s{s_ldsbase}
    """)
    for it in range(R // 8):
        a(f"s_mov_b32 m0, s41")
        a(f"buffer_load_dwordx4 v2, s[{srcsrd}:{srcsrd+3}], s40 offen lds")
        if it != R // 8 - 1:
            a(f"s_add_u32 s40, s40, {8*stride}")
            a(f"s_add_u32 s41, s41, 1024")
    a(f"""
    v_lshrrev_b32 v4, 4, v1
    v_bfe_u32 v5, v1, 2, 2
    v_and_b32 v6, 3, v1
    """)
    if mode == "nat":
        a("v_lshl_add_u32 v7, v4, 3, v5"); ca, cb = 32, 4
    elif mode == "dpair":
        a("v_lshl_add_u32 v7, v4, 2, v5"); ca, cb = 32, 16
    else:
        a("""
        v_mul_u32_u24 v7, 40, v4
        v_add_u32 v7, v7, v5
        """); ca, cb = 8, 4
    a(f"""
    v_lshlrev_b32 v7, 7, v7
    v_lshl_add_u32 v7, v6, 3, v7
    v_add_u32 v7, s{s_ldsbase}, v7
    v_lshlrev_b32 v8, 4, v1
    v_add_u32 v9, 4096, v8
    s_mul_i32 s42, s{s_nbk}, {4*kst*1024}
    s_mul_i32 s43, s{s_kb}, {nks*1024}
    s_add_u32 s42, s42, s43
    s_add_u32 s42, s42, {dstbase}
    s_waitcnt vmcnt(0)
    """)
    for unit in range(4):
        for sp in range(nks):
            r = 12 + 4 * sp
            for h in range(2):
                off = (ca * sp + cb * h) * 128 + unit * 32
                a(f"ds_read_b64_tr_b16 v[{r+2*h}:{r+2*h+1}], v7 offset:{off}")
        for sp in range(nks):
            r = 12 + 4 * sp
            a(f"s_waitcnt lgkmcnt({2*(nks-1-sp)})")
            if sp < 4:
                a(f"buffer_store_dwordx4 v[{r}:{r+3}], v8, s[12:15], s42 offen offset:{sp*1024}")
            else:
                a(f"buffer_store_dwordx4 v[{r}:{r+3}], v9, s[12:15], s42 offen")
        if unit != 3:
            a(f"s_add_u32 s42, s42, {kst*1024}")
            a("s_waitcnt vmcnt(0)")
    a("s_endpgm")


def gen_k0(a):
    name = "prep_kernel"
    kernel_header(a, name)
    a(f"""
    s_cmp_ge_u32 s2, {K0_NWG}
    """)
    a.branch("s_cbranch_scc1", "K0_END")
    a(f"""
    s_load_dwordx2 s[4:5], s[0:1], {A_WS}
    s_load_dwordx4 s[20:23], s[0:1], {A_C}
    s_load_dwordx4 s[24:27], s[0:1], {A_X}
    s_load_dwordx4 s[28:31], s[0:1], {A_WK}
    s_load_dwordx2 s[32:33], s[0:1], {A_WO}
    s_load_dwordx2 s[34:35], s[0:1], {A_W1}
    s_load_dwordx2 s[36:37], s[0:1], {A_W2}
    v_and_b32 v1, 63, v0
    v_lshrrev_b32 v2, 6, v0
    """)
    a("v_readfirstlane_b32 s3, v2")
    a("s_waitcnt lgkmcnt(0)")
    srd(a, 12, 4, WS_SIZE)
    a(f"s_cmp_ge_u32 s2, {K0_MOD}")
    a.branch("s_cbranch_scc1", "K0_NOTMOD")
    srd(a, 8, 22, 640 * 7680)
    srd(a, 16, 20, 1280)
    a(f"""
    s_and_b32 s40, s2, 3
    s_lshr_b32 s41, s2, 2
    v_and_b32 v2, 7, v0
    v_lshrrev_b32 v3, 3, v0
    v_mul_u32_u24 v4, 7680, v3
    v_lshl_add_u32 v4, v2, 4, v4
    s_mul_i32 s42, s40, {160*7680}
    s_lshl_b32 s43, s41, 7
    s_add_u32 s42, s42, s43
    v_lshlrev_b32 v5, 1, v3
    s_mul_i32 s44, s40, 320
    """)
    for i in range(5):
        a(f"buffer_load_ushort v{10+i}, v5, s[16:19], s44 offen offset:{64*i}")
    for i in range(5):
        a(f"buffer_load_dwordx4 v[{20+4*i}:{23+4*i}], v4, s[8:11], s42 offen")
        if i < 4:
            a(f"s_add_u32 s42, s42, {32*7680}")
    for j in range(8):
        a(f"v_mov_b32 v{40+j}, 0")
    a("s_waitcnt vmcnt(5)")
    for i in range(5):
        a(f"""
        v_lshlrev_b32 v{10+i}, 16, v{10+i}
        v_mul_f32 v{15+i}, {f32(-LOG2E)}, v{10+i}
        """)
    for i in range(5):
        a(f"v_exp_f32 v{15+i}, v{15+i}")
    for i in range(5):
        a(f"v_add_f32 v{15+i}, 1.0, v{15+i}")
    for i in range(5):
        a(f"v_rcp_f32 v{15+i}, v{15+i}")
    for i in range(5):
        a(f"v_mul_f32 v{10+i}, v{10+i}, v{15+i}")
    for i in range(5):
        a(f"v_cvt_pk_bf16_f32 v{10+i}, v{10+i}, v{10+i}")
    for i in range(5):
        a(f"v_and_b32 v{15+i}, 0xffff0000, v{10+i}")
        a(f"v_and_b32 v{10+i}, 0xffff, v{10+i}")
    for i in range(5):
        a(f"s_waitcnt vmcnt({4-i})")
        for p in range(4):
            a(f"v_dot2_f32_bf16 v{40+2*p}, v{20+4*i+p}, v{10+i}, v{40+2*p}")
            a(f"v_dot2_f32_bf16 v{41+2*p}, v{20+4*i+p}, v{15+i}, v{41+2*p}")
    a(f"""
    v_lshlrev_b32 v6, 5, v0
    ds_write_b128 v6, v[40:43]
    ds_write_b128 v6, v[44:47] offset:16
    s_waitcnt lgkmcnt(0)
    s_barrier
    s_cmp_lg_u32 s3, 0
    """)
    a.branch("s_cbranch_scc1", "K0_END")
    a("v_lshlrev_b32 v6, 2, v1")
    for r in range(32):
        a(f"ds_read_b32 v{10+r}, v6 offset:{256*r}")
    a("s_waitcnt lgkmcnt(0)")
    for st in (16, 8, 4, 2, 1):
        for r in range(st):
            a(f"v_add_f32 v{10+r}, v{10+r}, v{10+r+st}")
    a(f"""
    s_mul_i32 s42, s40, {3840*4}
    s_lshl_b32 s43, s41, 8
    s_add_u32 s42, s42, s43
    s_add_u32 s42, s42, {MODP}
    buffer_store_dword v10, v6, s[12:15], s42 offen
    s_endpgm
    """)
    a.hists = []
    a.label("K0_NOTMOD")
    a(f"s_cmp_ge_u32 s2, {K0_MOD+K0_LN}")
    a.branch("s_cbranch_scc1", "K0_NOTLN")
    srd(a, 8, 24, 2048 * 1280)
    a(f"""
    s_sub_u32 s40, s2, {K0_MOD}
    v_lshrrev_b32 v2, 4, v0
    v_and_b32 v3, 15, v0
    v_mul_u32_u24 v4, 1280, v2
    v_lshl_add_u32 v4, v3, 4, v4
    s_mul_i32 s41, s40, {16*1280}
    """)
    for u in range(5):
        a(f"buffer_load_dwordx4 v[{20+4*u}:{23+4*u}], v4, s[8:11], s41 offen offset:{256*u}")
    a(f"""
    s_mov_b32 s42, 0x3f803f80
    s_mov_b32 s43, 0x00003f80
    s_mov_b32 s44, 0x3f800000
    v_mov_b32 v10, 0
    v_lshrrev_b32 v5, 2, v3
    v_and_b32 v6, 3, v3
    v_lshlrev_b32 v5, 10, v5
    v_lshl_add_u32 v5, v6, 8, v5
    v_lshl_add_u32 v5, v2, 4, v5
    s_mul_i32 s45, s40, 20480
    s_add_u32 s45, s45, {NF}
    """)
    for u in range(5):
        a(f"s_waitcnt vmcnt({4-u})")
        for p in range(4):
            a(f"v_dot2_f32_bf16 v10, v{20+4*u+p}, s42, v10")
    row16_sum(a, 10)
    a(f"v_mul_f32 v10, {f32(1.0/640)}, v10")
    bf16_round(a, 11, 10)
    a("v_sub_f32 v12, v10, v11")
    a("v_sub_f32 v11, 0, v11")
    for p in range(20):
        a(f"v_dot2_f32_bf16 v{40+2*p}, v{20+p}, s43, v11")
        a(f"v_dot2_f32_bf16 v{41+2*p}, v{20+p}, s44, v11")
    a("v_mul_f32 v13, v40, v40")
    a("v_mul_f32 v14, v41, v41")
    for p in range(1, 20):
        a(f"v_fmac_f32 v13, v{40+2*p}, v{40+2*p}")
        a(f"v_fmac_f32 v14, v{41+2*p}, v{41+2*p}")
    a("v_add_f32 v13, v13, v14")
    row16_sum(a, 13)
    a(f"v_mul_f32 v13, {f32(1.0/640)}, v13")
    a("v_fma_f32 v13, -v12, v12, v13")
    a("v_max_f32 v13, 0, v13")
    bf16_round(a, 13, 13)
    a(f"v_add_f32 v13, {f32(1e-5)}, v13")
    bf16_round(a, 13, 13)
    a("v_sqrt_f32 v13, v13")
    bf16_round(a, 13, 13)
    a("v_rcp_f32 v13, v13")
    for p in range(40):
        a(f"v_mul_f32 v{40+p}, v{40+p}, v13")
    for p in range(20):
        a(f"v_cvt_pk_bf16_f32 v{20+p}, v{40+2*p}, v{41+2*p}")
    for u in range(5):
        a(f"buffer_store_dwordx4 v[{20+4*u}:{23+4*u}], v5, s[12:15], s45 offen")
        if u < 4:
            a("s_add_u32 s45, s45, 4096")
    a("s_endpgm")
    a.hists = []
    a.label("K0_NOTLN")
    a(f"s_cmp_ge_u32 s2, {K0_MOD+K0_LN+K0_SH}")
    a.branch("s_cbranch_scc1", "K0_KVJOB")
    a(f"""
    s_sub_u32 s50, s2, {K0_MOD+K0_LN}
    s_lshl_b32 s50, s50, 2
    s_add_u32 s50, s50, s3
    s_mul_i32 s53, s3, 20480
    s_cmp_ge_u32 s50, 40
    """)
    a.branch("s_cbranch_scc1", "K0_SH_WO")
    srd(a, 8, 26, 640 * 1280)
    a("""
    s_mul_i32 s51, s50, 205
    s_lshr_b32 s51, s51, 11
    s_mul_i32 s52, s51, 10
    s_sub_u32 s52, s50, s52
    """)
    shuffle_job(a, 8, 1280, 160, 5, 20, "nat", WQF, 51, 52, 53)
    a.hists = []
    a.label("K0_SH_WO")
    a("s_cmp_ge_u32 s50, 80")
    a.branch("s_cbranch_scc1", "K0_SH_W1")
    srd(a, 8, 32, 640 * 1280)
    a("""
    s_sub_u32 s50, s50, 40
    s_mul_i32 s51, s50, 205
    s_lshr_b32 s51, s51, 11
    s_mul_i32 s52, s51, 10
    s_sub_u32 s52, s50, s52
    """)
    shuffle_job(a, 8, 1280, 160, 5, 20, "wo", WOF, 51, 52, 53)
    a.hists = []
    a.label("K0_SH_W1")
    a("s_cmp_ge_u32 s50, 188")
    a.branch("s_cbranch_scc1", "K0_SH_W2")
    srd(a, 8, 34, 640 * 3456)
    a("""
    s_sub_u32 s50, s50, 80
    s_mul_i32 s51, s50, 19
    s_lshr_b32 s51, s51, 9
    s_mul_i32 s52, s51, 27
    s_sub_u32 s52, s50, s52
    """)
    shuffle_job(a, 8, 3456, 160, 5, 20, "dpair", W1F, 51, 52, 53)
    a.hists = []
    a.label("K0_SH_W2")
    srd(a, 8, 36, 1728 * 1280)
    a("""
    s_sub_u32 s50, s50, 188
    s_mul_i32 s51, s50, 205
    s_lshr_b32 s51, s51, 11
    s_mul_i32 s52, s51, 10
    s_sub_u32 s52, s50, s52
    """)
    shuffle_job(a, 8, 1280, 96, 3, 54, "dpair", W2F, 51, 52, 53)
    a.hists = []
    a.label("K0_KVJOB")
    a(f"""
    s_sub_u32 s50, s2, {K0_MOD+K0_LN+K0_SH}
    s_lshl_b32 s50, s50, 2
    s_add_u32 s50, s50, s3
    s_mul_i32 s51, s50, 103
    s_lshr_b32 s51, s51, 11
    s_mul_i32 s52, s51, 20
    s_sub_u32 s52, s50, s52
    s_cmp_ge_u32 s51, 2
    s_cselect_b32 s8, s30, s28
    s_cselect_b32 s9, s31, s29
    s_and_b32 s9, s9, 0xffff
    s_mov_b32 s10, {640*40}
    s_mov_b32 s11, 0x00020000
    s_and_b32 s53, s51, 1
    s_lshl_b32 s53, s53, 4
    v_and_b32 v2, 15, v1
    v_add_u32 v2, s53, v2
    v_lshrrev_b32 v3, 4, v1
    v_mul_u32_u24 v3, 320, v3
    v_lshl_add_u32 v3, v2, 1, v3
    v_mov_b32 v4, 0x40000000
    v_cmp_gt_u32 vcc, 20, v2
    v_cndmask_b32 v3, v4, v3, vcc
    s_mul_i32 s54, s52, 1280
    """)
    for j in range(8):
        a(f"buffer_load_ushort v{20+j}, v3, s[8:11], s54 offen offset:{40*j}")
    a(f"""
    v_lshlrev_b32 v5, 4, v1
    s_lshl_b32 s55, s50, 10
    s_add_u32 s55, s55, {WKVF}
    s_waitcnt vmcnt(0)
    """)
    for p in range(4):
        a(f"v_lshl_or_b32 v{10+p}, v{21+2*p}, 16, v{20+2*p}")
    a("buffer_store_dwordx4 v[10:13], v5, s[12:15], s55 offen")
    a.label("K0_END")
    a("s_endpgm")
    return name, kernel_desc(name, 96), f"grid=({K0_NWG},1,1) block=(256,1,1) lds={K0_LDS}"


def build(kernels, path):
    a = Asm()
    descs, launches = [], []
    for g in kernels:
        name, desc, launch = g(a)
        descs.append(desc)
        launches.append(f"; @launch kernel={name} {launch}")
    hdr = open("adaLN_cond__grouped_kv_mqa__mixer_channel_mlp__prompt.s.ref").read().split("\n")
    hdr = [l for l in hdr if l.startswith(";") and "@launch" not in l and "Override" not in l and "grid=ceil" not in l]
    out = "\n".join(hdr) + "\n" + "\n".join(launches) + "\n"
    out += '.amdgcn_target "amdgcn-amd-amdhsa--gfx950"\n.text\n'
    out += a.text()
    out += '.section .rodata,"a"\n.p2align 6\n' + "".join(".p2align 6\n" + d for d in descs)
    open(path, "w").write(out)
    print(f"wrote {path}: {len(out)} bytes, nops inserted {a.nops_inserted}")


if __name__ == "__main__":
    import gen_rest
    path = sys.argv[1] if len(sys.argv) > 1 else "adaLN_cond__grouped_kv_mqa__mixer_channel_mlp__prompt.s"
    build([gen_k0] + gen_rest.KERNELS, path)
```
